```python
import torch

def _softmax(x, axis=-1):
    return torch.softmax(x, dim=axis)
def _gelu(x):
    return torch.nn.functional.gelu(x, approximate="tanh")
def _silu(x):
    return torch.nn.functional.silu(x)
def _sigmoid(x):
    return torch.sigmoid(x)
def _layernorm(x, axis=-1, eps=1e-5):
    m = x.mean(dim=axis, keepdim=True)
    v = x.var(dim=axis, keepdim=True, unbiased=False)
    return (x - m) / torch.sqrt(v + eps)
def _scatter_add(tgt, idx, src, axis=0):
    return tgt.clone().index_add_(axis, idx, src)
def _segment_sum(src, seg, n):
    out = torch.zeros((n,) + src.shape[1:], dtype=src.dtype)
    return out.index_add_(0, seg, src)
def _pad(x, pw):
    flat = tuple(v for pair in reversed(pw) for v in pair)
    return torch.nn.functional.pad(x, flat)

kernel_name = 'sequential_preLN__gqa_block_cached__geglu_ffn__decode'

def setup_inputs():

    _w = (lambda a: (lambda t: t.to(torch.bfloat16) if t.is_floating_point() else t)(torch.as_tensor(a)))
    def _A_setup():
        B, Sq, D = 2, 1, 640
        Hq, Hkv, Sk, Dh = 32, 32, 8192, 128
        assert Hq % Hkv == 0, (Hq, Hkv)
        return {
            "x": _w((lambda *s: torch.randn(*s, dtype=torch.bfloat16) * 0.05)(B, Sq, D)),
            "k_cache": _w((lambda *s: torch.randn(*s, dtype=torch.bfloat16) * 3.2)(B, Hkv, Sk, Dh)),
            "v_cache": _w((lambda *s: torch.randn(*s, dtype=torch.bfloat16) * 0.4)(B, Hkv, Sk, Dh)),
            "wq": _w((lambda *s: torch.randn(*s, dtype=torch.bfloat16) * 3.2)(D, Hq * Dh) * (D ** -0.5)),
            "wo": _w((lambda *s: torch.randn(*s, dtype=torch.bfloat16) * 0.4)(Hq * Dh, D) * ((Hq * Dh) ** -0.5)),
        }
    _A_in = _A_setup()

    def _B_setup():
        B, S, D, F = 2, 1, 640, 1728
        return {
            "x": _w((lambda *s: torch.randn(*s, dtype=torch.bfloat16) * 0.05)(B, S, D)),
            "w_gate": _w((lambda *s: torch.randn(*s, dtype=torch.bfloat16) * 0.05)(D, F)),
            "w_up": _w((lambda *s: torch.randn(*s, dtype=torch.bfloat16) * 0.05)(D, F)),
            "w_down": _w((lambda *s: torch.randn(*s, dtype=torch.bfloat16) * 0.05)(F, D)),
        }
    _B_in = _B_setup()

    return {
        "A_x": _A_in["x"],
        "A_k_cache": _A_in["k_cache"],
        "A_v_cache": _A_in["v_cache"],
        "A_wq": _A_in["wq"],
        "A_wo": _A_in["wo"],
        "B_x": _B_in["x"],
        "B_w_gate": _B_in["w_gate"],
        "B_w_up": _B_in["w_up"],
        "B_w_down": _B_in["w_down"],
    }

def reference(A_x, A_k_cache, A_v_cache, A_wq, A_wo, B_x, B_w_gate, B_w_up, B_w_down):
    def _A_ref(x, k_cache, v_cache, wq, wo):
        B, Sq, D = x.shape
        Hq, Dh = 32, 128
        Hkv = k_cache.shape[1]
        rep = Hq // Hkv
        q = (lambda x, *d: x.permute(*d))((x @ wq).reshape(B, Sq, Hq, Dh), 0, 2, 1, 3)
        k = (lambda x, n, axis: torch.repeat_interleave(x, n, dim=axis))(k_cache, rep, axis=1)
        v = (lambda x, n, axis: torch.repeat_interleave(x, n, dim=axis))(v_cache, rep, axis=1)
        scores = torch.einsum("bhqd,bhkd->bhqk", q, k) * (Dh ** -0.5)
        p = _softmax(scores, axis=-1)
        o = torch.einsum("bhqk,bhkd->bhqd", p, v)
        return (lambda x, *d: x.permute(*d))(o, 0, 2, 1, 3).reshape(B, Sq, Hq * Dh) @ wo

    def _B_ref(x, w_gate, w_up, w_down):
        return (_gelu(x @ w_gate) * (x @ w_up)) @ w_down

    x = A_x
    h = x + _A_ref(_layernorm(x, axis=-1), A_k_cache, A_v_cache, A_wq, A_wo)
    h2 = h + _B_ref(_layernorm(h, axis=-1), B_w_gate, B_w_up, B_w_down)
    return h2
```

```python
import re

_REG = re.compile(r'^(-|\|)?(abs\()?([vas])(\d+|\[(\d+):(\d+)\])\)?\|?$')

def parse_regs(op):
    op = op.strip()
    if op in ("vcc",): return {("s", "vcc")}
    if op in ("vcc_lo", "vcc_hi"): return {("s", "vcc")}
    if op in ("exec", "exec_lo", "exec_hi"): return {("s", "exec")}
    if op == "m0": return {("s", "m0")}
    m = _REG.match(op)
    if not m: return set()
    k = m.group(3)
    if m.group(5) is not None:
        return {(k, i) for i in range(int(m.group(5)), int(m.group(6)) + 1)}
    return {(k, int(m.group(4)))}

TRANS = ("v_exp_f32", "v_log_f32", "v_rcp_f32", "v_rsq_f32", "v_sqrt_f32", "v_sin_f32", "v_cos_f32", "v_rcp_iflag_f32")

class Ins:
    def __init__(self, text):
        self.text = text
        t = text.split(";")[0].strip()
        self.is_label = t.endswith(":")
        self.is_dir = t.startswith(".") or t == ""
        self.w = set(); self.r = set(); self.srcc = set(); self.srcab = set(); self.sdata = set()
        self.op = ""
        self.states = 1
        if self.is_label or self.is_dir:
            self.states = 0
            return
        parts = t.split(None, 1)
        self.op = op = parts[0]
        rest = parts[1] if len(parts) > 1 else ""
        ops = []; cur = ""; depth = 0
        for ch in rest:
            if ch in "[(": depth += 1
            if ch in "])": depth -= 1
            if ch == "," and depth == 0: ops.append(cur.strip()); cur = ""
            else: cur += ch
        if cur.strip(): ops.append(cur.strip())
        mods = ""
        if ops:
            sp = ops[-1].split(None, 1)
            ops[-1] = sp[0]
            mods = sp[1] if len(sp) > 1 else ""
        self.ops = ops; self.mods = mods
        R = [parse_regs(o) for o in ops]
        self.valu = op.startswith("v_") and not op.startswith("v_mfma")
        self.mfma = op.startswith("v_mfma")
        self.dpp = "_dpp" in op or "row_" in mods or "quad_perm" in mods or "wave_" in mods
        self.sdwa = "_sdwa" in op
        self.trans = any(op.startswith(x) for x in TRANS)
        self.dlop = op.startswith("v_dot")
        self.vmem = op.startswith(("buffer_", "global_", "flat_"))
        self.ds = op.startswith("ds_")
        self.salu = op.startswith("s_")
        self.branch = op.startswith(("s_branch", "s_cbranch"))
        self.permlane = op.startswith("v_permlane")
        self.readlane = op.startswith(("v_readlane", "v_readfirstlane", "v_writelane"))
        self.ldsdma = self.vmem and (re.search(r'\blds\b', mods) is not None or "load_lds" in op)
        if op == "s_nop": self.states = int(ops[0], 0) + 1
        allr = set().union(*R) if R else set()
        if self.mfma:
            self.w = R[0]; self.srcab = R[1] | R[2]; self.srcc = R[3]; self.r = self.srcab | self.srcc
            self.passes = 8 if "32x32" in op else 4
        elif self.valu:
            if op.startswith("v_cmpx"):
                self.w = R[0] | {("s", "exec")}; self.r = set().union(*R[1:])
            elif op.startswith("v_cmp"):
                self.w = R[0]; self.r = set().union(*R[1:])
            elif self.permlane or op.startswith("v_swap"):
                self.w = allr; self.r = allr
            elif op.startswith(("v_add_co", "v_sub_co", "v_addc_co", "v_subb_co", "v_subrev_co", "v_div_scale", "v_mad_u64")):
                self.w = R[0] | R[1]; self.r = set().union(*R[2:])
            else:
                self.w = R[0]; self.r = set().union(*R[1:]) if len(R) > 1 else set()
                if op.startswith(("v_fmac", "v_dot2c", "v_dot4c", "v_mac", "v_pk_fmac", "v_writelane")) or self.dpp or self.sdwa:
                    self.r = self.r | R[0]
                if op.startswith("v_cndmask") and len(ops) == 3: self.r = self.r | {("s", "vcc")}
                if op.startswith("v_div_fmas"): self.r = self.r | {("s", "vcc")}
            if self.dpp: self.dppsrc = R[1]
        elif self.vmem:
            if "store" in op or ("atomic" in op) or self.ldsdma:
                self.r = allr
                if "atomic" in op and "sc0" in mods: self.w = R[0]
                if "store" in op and ("x3" in op or "x4" in op):
                    self.sdata = R[0] if op.startswith("buffer") else R[1]
            else:
                self.w = R[0]; self.r = set().union(*R[1:])
            if self.ldsdma: self.r = self.r | {("s", "m0")}
        elif self.ds:
            if op.startswith(("ds_read", "ds_bpermute", "ds_permute", "ds_swizzle")) or "_rtn" in op:
                self.w = R[0]; self.r = set().union(*R[1:])
            else:
                self.r = allr
        elif self.salu:
            if op.startswith(("s_cmp", "s_bitcmp", "s_waitcnt", "s_barrier", "s_nop", "s_sleep", "s_endpgm", "s_setprio", "s_branch", "s_cbranch")):
                self.r = allr
            else:
                self.w = R[0] if R else set(); self.r = set().union(*R[1:]) if len(R) > 1 else set()
                if "saveexec" in op: self.w = self.w | {("s", "exec")}

def isv(rs): return {x for x in rs if x[0] in "va"}
def iss(rs): return {x for x in rs if x[0] == "s"}

def need(p, c):
    n = 0
    if p.is_label or p.is_dir or c.is_label or c.is_dir: return 0
    pw_v = isv(p.w); pw_s = iss(p.w)
    if p.valu:
        if c.valu and c.dpp and (pw_v & c.dppsrc): n = max(n, 2)
        if c.valu and c.dpp and ("s", "exec") in pw_s: n = max(n, 5)
        if c.mfma and (pw_v & c.r): n = max(n, 2 if not p.dlop else 3)
        if c.mfma and ("s", "exec") in pw_s: n = max(n, 4)
        if c.permlane and (pw_v & c.r): n = max(n, 2)
        if c.permlane and ("s", "exec") in pw_s: n = max(n, 4)
        if c.readlane and (pw_v & c.r): n = max(n, 1)
        if c.readlane and ("s", "exec") in pw_s: n = max(n, 4)
        if c.readlane and (pw_s & iss(c.r)): n = max(n, 4)
        if c.valu and (pw_s & iss(c.r)): n = max(n, 2)
        if c.op.startswith("v_div_fmas") and ("s", "vcc") in pw_s: n = max(n, 4)
        if c.vmem and (pw_s & iss(c.r)): n = max(n, 5)
        if p.trans and (c.valu or c.mfma) and not c.trans and (pw_v & c.r): n = max(n, 1)
        if p.trans and (c.vmem or c.ds) and (pw_v & c.r): n = max(n, 1)
        if p.sdwa and c.valu and (pw_v & (c.r | c.w)): n = max(n, 1)
        if p.dlop:
            if pw_v & (c.r | c.w):
                same = c.op == p.op
                if same:
                    ab = parse_regs(c.ops[1]) | parse_regs(c.ops[2])
                    if pw_v & ab: n = max(n, 3)
                else:
                    n = max(n, 3)
        if c.salu and (pw_s & c.r) and not c.branch: n = max(n, 1)
    if p.mfma:
        big = {4: 8, 8: 12}[p.passes]
        if c.mfma:
            if p.w & c.srcab: n = max(n, big)
            if p.w & c.srcc:
                if p.w == c.srcc and p.passes == c.passes: pass
                else: n = max(n, {4: 6, 8: 10}[p.passes])
            elif p.w & c.w: n = max(n, big)
        elif c.valu or c.vmem or c.ds:
            if p.w & (c.r | c.w): n = max(n, big)
        if c.valu and (p.srcc & c.w): n = max(n, {4: 3, 8: 7}[p.passes])
    if p.salu and ("s", "m0") in p.w and (c.ldsdma or "addtid" in c.op): n = max(n, 1)
    if p.sdata and (p.sdata & c.w): n = max(n, 2 if c.valu else 1)
    return n

class Asm:
    def __init__(self):
        self.lines = []
    def __call__(self, s):
        for l in s.split("\n"):
            l = l.strip()
            if l: self.lines.append(l)
    def label(self, name): self.lines.append(name + ":")
    def finalize(self):
        ins = [Ins(l) for l in self.lines]
        WIN = 14
        def check(hist, c):
            d = 0; worst = 0
            for p in reversed(hist):
                k = need(p, c)
                if k > d: worst = max(worst, k - d)
                d += p.states
                if d >= WIN: break
            return worst
        changed = True
        rounds = 0
        while changed:
            changed = False; rounds += 1
            out = []
            for c in ins:
                hist = []
                for p in reversed(out[-40:]):
                    if p.op in ("s_branch", "s_endpgm"): break
                    hist.append(p)
                hist.reverse()
                k = check(hist, c)
                if k:
                    out.append(Ins(f"s_nop {k-1}")); changed = True
                out.append(c)
            ins = out
            labels = {x.text.split(":")[0].strip(): i for i, x in enumerate(ins) if x.is_label}
            add = {}
            for i, b in enumerate(ins):
                if not getattr(b, "branch", False): continue
                tgt = labels[b.ops[0]]
                hist = []
                for p in reversed(ins[max(0, i - 40):i]):
                    if p.op in ("s_branch", "s_endpgm"): break
                    hist.append(p)
                hist.reverse(); hist.append(b)
                d = 0; j = tgt; worst = 0
                h2 = list(hist)
                nh = len(hist)
                while j < len(ins) and d < WIN:
                    c = ins[j]
                    dd = d
                    for p in reversed(hist):
                        k = need(p, c)
                        if k > dd: worst = max(worst, k - dd)
                        dd += p.states
                        if dd >= WIN: break
                    if c.op in ("s_branch", "s_endpgm"): break
                    d += c.states; j += 1
                if worst: add[i] = worst
            if add:
                changed = True
                out = []
                for i, x in enumerate(ins):
                    if i in add: out.append(Ins(f"s_nop {add[i]-1}"))
                    out.append(x)
                ins = out
            assert rounds < 20
        return "\n".join(("" if (x.is_label or x.is_dir) else "    ") + x.text for x in ins) + "\n"
```

```python
import sys, struct
sys.path.insert(0, "gen")
from asmlib import Asm

NAME = "sequential_preLN__gqa_block_cached__geglu_ffn__decode_kernel"
def f32(x): return "0x%08x" % struct.unpack("<I", struct.pack("<f", x))[0]

OFF_OP = 0x0
OFF_ST = 0x20000
OFF_YP = 0x24000
OFF_ZP = 0x30000
OFF_TS = 0x100000
WS_SIZE = 0x200000
L_QP = 0
L_OP = 2048
L_ST = 4096
L_OB = 4352
L_SF = 6656
L_HN = 6912
L_PG = 9728
L_AC = 11776
L_W = 16384
LDS_BYTES = L_W + 131072
R0_ID, F0_ID, O0_ID = 0, 40, 104
LOG2E = 1.4426950408889634
SPIN = 40000

def gen(R=16, D=6, rot=0, stamps=False, wqpol="", wpol="nt", kvpol="nt"):
    a = Asm()
    NIT = 128 // R
    assert D < R
    G = R // 16
    sWAVE, sH, sB, sS, sREC = "s3", "s6", "s7", "s8", "s9"
    pX, pK, pV, pWQ, pWO, pWG, pWU, pWD, pOUT, pDBG, pWS = 16, 18, 20, 22, 24, 28, 30, 32, 34, 36, 38
    rWS, rKV, rA, rB2, rX, rDBG = 40, 44, 48, 52, 56, 60
    sOFF, sCNT, sT0, sT1, sT2, sT3 = "s64", "s65", "s66", "s67", "s68", "s69"
    sVB = 70
    sM0, sM1, sM2 = "s[72:73]", "s[74:75]", "s[76:77]"
    sEX = "s[78:79]"
    sROLE, sRI = "s80", "s81"
    sSP = "s82"
    def srd(r, p, size, off=None):
        if off is None:
            a(f"s_mov_b32 s{r}, s{p}"); a(f"s_mov_b32 s{r+1}, s{p+1}")
        else:
            a(f"s_add_u32 s{r}, s{p}, {off}"); a(f"s_addc_u32 s{r+1}, s{p+1}, 0")
        a(f"s_mov_b32 s{r+2}, {size}"); a(f"s_mov_b32 s{r+3}, 0x20000")
    def S(r): return f"s[{r}:{r+3}]"
    def V(r, n=1): return f"v{r}" if n == 1 else f"v[{r}:{r+n-1}]"
    nstamp = [0]
    def stamp(idx):
        if not stamps: return
        a("s_memrealtime s[84:85]")
        a("s_lshl_b32 s86, s2, 3"); a(f"s_add_u32 s86, s86, {sWAVE}"); a("s_lshl_b32 s86, s86, 7"); a(f"s_add_u32 s86, s86, {OFF_TS + idx*8}")
        a("s_waitcnt lgkmcnt(0)")
        a("v_mov_b32 v252, s84"); a("v_mov_b32 v253, s85"); a("v_mov_b32 v254, 0")
        a("s_mov_b64 s[88:89], exec"); a("s_mov_b64 exec, 1")
        a(f"buffer_store_dwordx2 v[252:253], v254, {S(rWS)}, s86 offen")
        a("s_mov_b64 exec, s[88:89]")
    def bf16r(dst, src):
        a(f"v_cvt_pk_bf16_f32 {dst}, {src}, {src}"); a(f"v_and_b32 {dst}, 0xffff0000, {dst}")
    DPPF = "row_mask:0xf bank_mask:0xf"
    def wave_reduce(op, regs, tmp):
        for mod in ("quad_perm:[1,0,3,2]", "quad_perm:[2,3,0,1]", "row_half_mirror", "row_mirror"):
            for r in regs: a(f"{op}_dpp v{r}, v{r}, v{r} {mod} {DPPF}")
        for sw in ("v_permlane16_swap_b32", "v_permlane32_swap_b32"):
            for r, t in zip(regs, tmp): a(f"v_mov_b32 v{t}, v{r}")
            for r, t in zip(regs, tmp): a(f"{sw} v{r}, v{t}")
            for r, t in zip(regs, tmp): a(f"{op} v{r}, v{r}, v{t}")

    vLANE, vG, vC = 1, 2, 3
    vMASK = 4
    a("s_cmp_ge_u32 s2, 256"); a("s_cbranch_scc1 L_end")
    a("s_load_dwordx16 s[16:31], s[0:1], 0")
    a("s_load_dwordx8 s[32:39], s[0:1], 64")
    a("v_lshrrev_b32 v2, 6, v0")
    a(f"v_and_b32 v{vLANE}, 63, v0")
    a(f"v_readfirstlane_b32 {sWAVE}, v2")
    a("s_and_b32 s4, s2, 7"); a("s_lshr_b32 s5, s2, 3")
    a(f"s_lshr_b32 {sH}, s5, 3"); a(f"s_lshl_b32 {sH}, {sH}, 3"); a(f"s_add_u32 {sH}, {sH}, s4")
    a(f"s_lshr_b32 {sB}, s5, 2"); a(f"s_and_b32 {sB}, {sB}, 1")
    a(f"s_and_b32 {sS}, s5, 3")
    a(f"s_lshl_b32 {sREC}, {sB}, 5"); a(f"s_add_u32 {sREC}, {sREC}, {sH}"); a(f"s_lshl_b32 {sREC}, {sREC}, 2"); a(f"s_add_u32 {sREC}, {sREC}, {sS}")
    a(f"v_lshrrev_b32 v{vG}, 4, v{vLANE}"); a(f"v_and_b32 v{vC}, 15, v{vLANE}")
    a(f"s_mov_b32 {sROLE}, 0"); a(f"s_mov_b32 {sRI}, s2")
    a(f"s_cmp_lt_u32 s2, {F0_ID}"); a(f"s_cselect_b32 {sROLE}, 1, {sROLE}")
    a(f"s_sub_u32 {sT0}, s2, {F0_ID}")
    a(f"s_and_b32 {sT1}, {sT0}, 7"); a(f"s_lshr_b32 {sT2}, {sT0}, 4"); a(f"s_lshl_b32 {sT2}, {sT2}, 3"); a(f"s_add_u32 {sT1}, {sT1}, {sT2}")
    a(f"s_lshl_b32 {sT1}, {sT1}, 1"); a(f"s_lshr_b32 {sT2}, {sT0}, 3"); a(f"s_and_b32 {sT2}, {sT2}, 1"); a(f"s_add_u32 {sT1}, {sT1}, {sT2}")
    a(f"s_cmp_lt_u32 {sT0}, 64"); a(f"s_cselect_b32 {sT1}, {sT1}, 99")
    a(f"s_cmp_lt_u32 {sT1}, 54"); a(f"s_cselect_b32 {sROLE}, 2, {sROLE}"); a(f"s_cselect_b32 {sRI}, {sT1}, {sRI}")
    a(f"s_sub_u32 {sT0}, s2, {O0_ID}")
    a(f"s_cmp_lt_u32 {sT0}, 40"); a(f"s_cselect_b32 {sROLE}, 3, {sROLE}"); a(f"s_cselect_b32 {sRI}, {sT0}, {sRI}")
    a(f"v_and_b32 v8, 1, v{vC}"); a("v_lshlrev_b32 v8, 4, v8"); a("v_mov_b32 v9, 0xffff"); a("v_lshlrev_b32 v8, v8, v9")
    a(f"v_lshrrev_b32 v9, 1, v{vC}")
    for r in range(4):
        a(f"v_cmp_eq_u32 vcc, {r}, v9"); a(f"v_cndmask_b32 v{vMASK+r}, 0, v8, vcc")
    a("s_waitcnt lgkmcnt(0)")
    srd(rWS, pWS, WS_SIZE)
    srd(rX, pX, 2560)
    srd(rDBG, pDBG, 256)
    a(f"s_lshl_b32 {sT0}, {sREC}, 19")
    srd(rKV, pK, 0x80000, sT0)
    a(f"s_add_u32 s{sVB}, s{pV}, {sT0}"); a(f"s_addc_u32 s{sVB+1}, s{pV+1}, 0")
    a(f"s_lshl_b32 {sT0}, {sH}, 8")
    srd(rA, pWQ, 640 * 8192 - 31 * 256, sT0)
    srd(rB2, pWS, 0)
    a(f"s_cmp_ge_u32 {sWAVE}, 4"); a("s_cbranch_scc1 L_helper")

    vOFF = 8; vQ = 10; vSC = 14; vACC = 22; vBOP = 26; vMX = 34; vL = 35; vT = 36; vP = 48; vRING = 64
    stamp(0)
    a(f"v_lshlrev_b32 v{vOFF}, 4, v0")
    a(f"s_mul_i32 {sOFF}, s2, {rot}"); a(f"s_and_b32 {sOFF}, {sOFF}, 0x7ffff")
    nst = 1 if stamps else 0
    def ld(slot):
        a(f"buffer_load_dwordx4 {V(vRING+4*slot,4)}, v{vOFF}, {S(rKV)}, {sOFF} offen {kvpol}")
        a(f"s_add_u32 {sOFF}, {sOFF}, 4096")
        if rot: a(f"s_and_b32 {sOFF}, {sOFF}, 0x7ffff")
    for i in range(R):
        if i >= D: a(f"s_waitcnt vmcnt({D-1})")
        ld(i)
    a(f"v_and_b32 v{vT}, 3, v{vC}")
    a(f"v_cmp_eq_u32 {sM0}, 1, v{vT}"); a(f"v_cmp_eq_u32 {sM1}, 2, v{vT}"); a(f"v_cmp_eq_u32 {sM2}, 3, v{vT}")
    a(f"v_mov_b32 v{vMX}, 0xff800000")
    a(f"v_lshlrev_b32 v{vT}, 5, v{vC}")
    a("s_barrier")
    qa = [vP, vP + 8, vSC, vBOP]
    for w in range(4):
        a(f"ds_read_b128 {V(qa[w],4)}, v{vT} offset:{L_QP+512*w}")
        a(f"ds_read_b128 {V(qa[w]+4,4)}, v{vT} offset:{L_QP+512*w+16}")
    a("s_waitcnt lgkmcnt(0)")
    for e in range(8):
        a(f"v_add_f32 v{qa[0]+e}, v{qa[0]+e}, v{qa[1]+e}"); a(f"v_add_f32 v{qa[2]+e}, v{qa[2]+e}, v{qa[3]+e}")
    for e in range(8):
        a(f"v_add_f32 v{qa[0]+e}, v{qa[0]+e}, v{qa[2]+e}")
    for r in range(4):
        a(f"v_cvt_pk_bf16_f32 v{vQ+r}, v{qa[0]+2*r}, v{qa[0]+2*r+1}")
    stamp(1)
    a(f"s_mov_b32 {sCNT}, {NIT}")
    a(f"s_mov_b32 {sT3}, {f32(128 ** -0.5)}")
    a.label("L_kloop")
    a(f"s_cmp_eq_u32 {sCNT}, 1")
    a(f"s_cselect_b32 s{rKV}, s{sVB}, s{rKV}"); a(f"s_cselect_b32 s{rKV+1}, s{sVB+1}, s{rKV+1}")
    if not rot: a(f"s_cselect_b32 {sOFF}, 0, {sOFF}")
    for g in range(G):
        for j in range(16):
            sl = 16 * g + j; k = vRING + 4 * sl
            a(f"v_dot2_f32_bf16 v{vP+j}, v{k}, v{vQ}, 0")
            for r in range(1, 4): a(f"v_dot2_f32_bf16 v{vP+j}, v{k+r}, v{vQ+r}, v{vP+j}")
            a(f"s_waitcnt vmcnt({D-1})")
            ld(sl)
        for j in range(8):
            a(f"v_add_f32_dpp v{vP+j}, v{vP+j}, v{vP+j} row_ror:8 row_mask:0xf bank_mask:0x3")
        for j in range(8):
            a(f"v_add_f32_dpp v{vP+j}, v{vP+j+8}, v{vP+j+8} row_ror:8 row_mask:0xf bank_mask:0xc")
        for j in range(4):
            a(f"v_add_f32_dpp v{vP+j}, v{vP+j}, v{vP+j} row_shl:4 row_mask:0xf bank_mask:0x5")
        for j in range(4):
            a(f"v_add_f32_dpp v{vP+j}, v{vP+j+4}, v{vP+j+4} row_shr:4 row_mask:0xf bank_mask:0xa")
        for mod in ("quad_perm:[2,3,0,1]", "quad_perm:[1,0,3,2]"):
            for j in range(4): a(f"v_add_f32_dpp v{vP+j}, v{vP+j}, v{vP+j} {mod} {DPPF}")
        a(f"v_cndmask_b32 v{vP}, v{vP}, v{vP+1}, {sM0}")
        a(f"v_cndmask_b32 v{vP}, v{vP}, v{vP+2}, {sM1}")
        a(f"v_cndmask_b32 v{vP}, v{vP}, v{vP+3}, {sM2}")
        bf16r(f"v{vP}", f"v{vP}")
        a(f"v_mul_f32 v{vP}, {sT3}, v{vP}")
        for i in range(7): a(f"v_mov_b32 v{vSC+i}, v{vSC+i+1}")
        bf16r(f"v{vSC+7}", f"v{vP}")
        a(f"v_max_f32 v{vMX}, v{vMX}, v{vSC+7}")
    a(f"s_sub_u32 {sCNT}, {sCNT}, 1"); a(f"s_cmp_lg_u32 {sCNT}, 0"); a("s_cbranch_scc1 L_kloop")
    stamp(2)
    wave_reduce("v_max_f32", [vMX], [vT])
    a(f"s_mov_b32 {sT3}, {f32(LOG2E)}")
    a(f"v_mov_b32 v{vL}, 0")
    for i in range(8): a(f"v_sub_f32 v{vSC+i}, v{vSC+i}, v{vMX}")
    for i in range(8): a(f"v_mul_f32 v{vSC+i}, {sT3}, v{vSC+i}")
    for i in range(8): a(f"v_exp_f32 v{vSC+i}, v{vSC+i}")
    for i in range(8): a(f"v_add_f32 v{vL}, v{vL}, v{vSC+i}")
    for i in range(8): a(f"v_cvt_pk_bf16_f32 v{vSC+i}, v{vSC+i}, v{vSC+i}")
    wave_reduce("v_add_f32", [vL], [vT])
    a(f"s_lshl_b32 {sT0}, {sWAVE}, 3"); a(f"v_mov_b32 v{vT}, {sT0}")
    a(f"ds_write_b64 v{vT}, {V(vMX,2)} offset:{L_ST}")
    for r in range(4): a(f"v_mov_b32 v{vACC+r}, 0")
    def vstep(sl, j, preg, wait, issue):
        k = vRING + 4 * sl; bo = vBOP + 4 * (j & 1)
        for r in range(4): a(f"v_and_b32_dpp v{bo+r}, v{preg}, v{vMASK+r} row_newbcast:{j} {DPPF}")
        if not issue and wait < D: a(f"s_waitcnt vmcnt({wait})")
        a(f"v_mfma_f32_16x16x32_bf16 {V(vACC,4)}, {V(bo,4)}, {V(k,4)}, {V(vACC,4)}")
        if issue:
            a(f"s_waitcnt vmcnt({wait})")
            ld(sl)
    if NIT > 1:
        a(f"s_mov_b32 {sCNT}, {NIT-1}")
        a.label("L_vloop")
        for g in range(G):
            for j in range(16): vstep(16 * g + j, j, vSC + g, D - 1, True)
        for i in range(8 - G): a(f"v_mov_b32 v{vSC+i}, v{vSC+i+G}")
        a(f"s_sub_u32 {sCNT}, {sCNT}, 1"); a(f"s_cmp_lg_u32 {sCNT}, 0"); a("s_cbranch_scc1 L_vloop")
    for g in range(G):
        for j in range(16):
            sl = 16 * g + j
            vstep(sl, j, vSC + g, R - 1 - sl, False)
    a(f"v_lshlrev_b32 v{vT}, 5, v{vC}"); a(f"v_lshl_add_u32 v{vT}, v{vG}, 4, v{vT}")
    a(f"s_lshl_b32 {sT0}, {sWAVE}, 9"); a(f"v_add_u32 v{vT}, {sT0}, v{vT}")
    a("s_mov_b64 exec, 0xffffffff")
    a(f"ds_write_b128 v{vT}, {V(vACC,4)} offset:{L_OP}")
    a("s_mov_b64 exec, -1")
    stamp(3)
    a("s_waitcnt lgkmcnt(0)")
    a("s_barrier")
    a(f"s_cmp_lg_u32 {sWAVE}, 0"); a("s_cbranch_scc1 L_tail")
    a(f"v_lshlrev_b32 v{vT}, 4, v{vLANE}"); a(f"v_and_b32 v{vT}, 0x1ff, v{vT}")
    a(f"v_mov_b32 v{vT+1}, 0")
    a(f"ds_read_b128 {V(vSC,4)}, v{vT+1} offset:{L_ST}"); a(f"ds_read_b128 {V(vSC+4,4)}, v{vT+1} offset:{L_ST+16}")
    for w in range(4): a(f"ds_read_b128 {V(vP+4*w,4)}, v{vT} offset:{L_OP+512*w}")
    a("s_waitcnt lgkmcnt(4)")
    a(f"v_max_f32 v{vMX}, v{vSC}, v{vSC+2}"); a(f"v_max3_f32 v{vMX}, v{vMX}, v{vSC+4}, v{vSC+6}")
    for w in range(4): a(f"v_sub_f32 v{vSC+2*w}, v{vSC+2*w}, v{vMX}")
    for w in range(4): a(f"v_mul_f32 v{vSC+2*w}, {sT3}, v{vSC+2*w}")
    for w in range(4): a(f"v_exp_f32 v{vSC+2*w}, v{vSC+2*w}")
    a(f"v_mul_f32 v{vL}, v{vSC}, v{vSC+1}")
    for w in range(1, 4): a(f"v_fmac_f32 v{vL}, v{vSC+2*w}, v{vSC+2*w+1}")
    a("s_waitcnt lgkmcnt(0)")
    for r in range(4): a(f"v_mul_f32 v{vACC+r}, v{vSC}, v{vP+r}")
    for w in range(1, 4):
        for r in range(4): a(f"v_fmac_f32 v{vACC+r}, v{vSC+2*w}, v{vP+4*w+r}")
    a(f"s_lshl_b32 {sT0}, {sREC}, 9"); a(f"s_lshl_b32 {sT1}, {sREC}, 3"); a(f"s_add_u32 {sT1}, {sT1}, {OFF_ST}")
    a("s_mov_b64 exec, 0xffffffff")
    a(f"buffer_store_dwordx4 {V(vACC,4)}, v{vT}, {S(rWS)}, {sT0} offen sc1")
    a("s_mov_b64 exec, 1")
    a(f"buffer_store_dwordx2 {V(vMX,2)}, v{vT+1}, {S(rWS)}, {sT1} offen sc1")
    a("s_mov_b64 exec, -1")
    stamp(4)
    a("s_branch L_tail")

    a.label("L_helper")
    hX = 10; hC = 20; hT = 24; hACC = 32; hAOP = 36; hW = 64
    sHW = sT3
    a(f"s_sub_u32 {sHW}, {sWAVE}, 4")
    a(f"s_mul_i32 {sT0}, {sB}, 1280")
    a(f"v_lshlrev_b32 v8, 2, v{vLANE}")
    for i in range(5): a(f"buffer_load_dword v{hX+2*i}, v8, {S(rX)}, {sT0} offen offset:{256*i}")
    a(f"v_lshl_add_u32 v9, v{vC}, 2, v{vG}"); a("v_lshlrev_b32 v9, 1, v9")
    a(f"s_mul_i32 {sT1}, {sHW}, 320"); a(f"s_add_u32 {sT1}, {sT1}, {sT0}")
    for t in range(3): a(f"buffer_load_ushort v{hC+t}, v9, {S(rX)}, {sT1} offen offset:{128*t}")
    a(f"v_lshlrev_b32 v8, 13, v{vG}"); a(f"v_lshl_add_u32 v8, v{vC}, 4, v8")
    a(f"s_mul_i32 {sOFF}, {sHW}, {160*8192}")
    for n in range(40):
        a(f"buffer_load_dwordx4 {V(hW+4*n,4)}, v8, {S(rA)}, {sOFF} offen {wqpol}")
        a(f"s_add_u32 {sOFF}, {sOFF}, 32768")
    a("s_waitcnt vmcnt(40)")
    for i in range(5):
        a(f"v_and_b32 v{hX+2*i+1}, 0xffff0000, v{hX+2*i}"); a(f"v_lshlrev_b32 v{hX+2*i}, 16, v{hX+2*i}")
    def ln_finish(vmean, vvar, t0, t1):
        bf16r(f"v{vmean}", f"v{vmean}")
        bf16r(f"v{vvar}", f"v{vvar}")
        a(f"v_add_f32 v{vvar}, {f32(1e-5)}, v{vvar}")
        bf16r(f"v{vvar}", f"v{vvar}")
        a(f"v_sqrt_f32 v{vvar}, v{vvar}")
        bf16r(f"v{vvar}", f"v{vvar}")
        a(f"v_rcp_f32 v{t0}, v{vvar}")
    def ln_apply(regs, vmean, vden, vrcp, tmps):
        for r in regs: a(f"v_sub_f32 v{r}, v{r}, v{vmean}")
        for r in regs: bf16r(f"v{r}", f"v{r}")
        for r, t in zip(regs, tmps): a(f"v_mul_f32 v{t}, v{r}, v{vrcp}")
        for r, t in zip(regs, tmps): a(f"v_fma_f32 v{r}, -v{t}, v{vden}, v{r}")
        for r, t in zip(regs, tmps): a(f"v_fma_f32 v{r}, v{r}, v{vrcp}, v{t}")
    a(f"v_add_f32 v{hT}, v{hX}, v{hX+1}")
    for i in range(2, 10): a(f"v_add_f32 v{hT}, v{hT}, v{hX+i}")
    wave_reduce("v_add_f32", [hT], [hT + 1])
    a(f"v_mul_f32 v{hT}, {f32(1/640)}, v{hT}")
    for i in range(10): a(f"v_sub_f32 v{hX+i}, v{hX+i}, v{hT}")
    a(f"v_mul_f32 v{hT+2}, v{hX}, v{hX}")
    for i in range(1, 10): a(f"v_fmac_f32 v{hT+2}, v{hX+i}, v{hX+i}")
    wave_reduce("v_add_f32", [hT + 2], [hT + 1])
    a(f"v_mul_f32 v{hT+2}, {f32(1/640)}, v{hT+2}")
    ln_finish(hT, hT + 2, hT + 3, hT + 1)
    for t in range(3): a(f"v_lshlrev_b32 v{hC+t}, 16, v{hC+t}")
    ln_apply([hC, hC + 1, hC + 2], hT, hT + 2, hT + 3, [hT + 4, hT + 5, hT + 6])
    for t in range(3): a(f"v_cvt_pk_bf16_f32 v{hC+t}, v{hC+t}, v{hC+t}")
    for r in range(4): a(f"v_mov_b32 v{hACC+r}, 0")
    for n in range(40):
        bo = hAOP + 4 * (n & 1)
        for r in range(4): a(f"v_and_b32_dpp v{bo+r}, v{hC+(n>>4)}, v{vMASK+r} row_newbcast:{n&15} {DPPF}")
        a(f"s_waitcnt vmcnt({39-n})")
        a(f"v_mfma_f32_16x16x32_bf16 {V(hACC,4)}, {V(bo,4)}, {V(hW+4*n,4)}, {V(hACC,4)}")
    a(f"v_lshlrev_b32 v8, 5, v{vC}"); a(f"v_lshl_add_u32 v8, v{vG}, 4, v8")
    a(f"s_lshl_b32 {sT0}, {sHW}, 9"); a(f"v_add_u32 v8, {sT0}, v8")
    a("s_mov_b64 exec, 0xffffffff")
    a(f"ds_write_b128 v8, {V(hACC,4)} offset:{L_QP}")
    a("s_mov_b64 exec, -1")
    a("s_waitcnt lgkmcnt(0)")
    a("s_barrier")
    stamp(1)
    for r in range(4): a(f"v_mov_b32 v{hACC+r}, -1")
    a(f"v_lshlrev_b32 v8, 4, v{vLANE}")
    a(f"s_cmp_lg_u32 {sHW}, 0"); a("s_cbranch_scc1 L_h_noclear")
    a(f"s_lshl_b32 {sT0}, {sREC}, 9"); a(f"s_lshl_b32 {sT1}, {sREC}, 3"); a(f"s_add_u32 {sT1}, {sT1}, {OFF_ST}")
    a("s_mov_b64 exec, 0xffffffff")
    a(f"buffer_store_dwordx4 {V(hACC,4)}, v8, {S(rWS)}, {sT0} offen sc1")
    a("s_mov_b64 exec, 1")
    a(f"buffer_store_dwordx2 {V(hACC,2)}, v8, {S(rWS)}, {sT1} offen sc1")
    a("s_mov_b64 exec, -1")
    a(f"s_cmp_lg_u32 {sROLE}, 1"); a("s_cbranch_scc1 L_h_c2")
    a(f"s_mul_i32 {sT0}, {sRI}, 52429"); a(f"s_lshr_b32 {sT0}, {sT0}, 18")
    a(f"s_mul_i32 {sT1}, {sT0}, 5"); a(f"s_sub_u32 {sT1}, {sRI}, {sT1}")
    a(f"s_mul_i32 {sT0}, {sT0}, 5120"); a(f"s_lshl_b32 {sT1}, {sT1}, 9"); a(f"s_add_u32 {sT0}, {sT0}, {sT1}"); a(f"s_add_u32 {sT0}, {sT0}, {OFF_YP}")
    a(f"v_lshrrev_b32 v9, 5, v{vLANE}"); a("v_mul_u32_u24 v9, 2048, v9"); a("v_add_u32 v9, v9, v8")
    a(f"buffer_store_dwordx4 {V(hACC,4)}, v9, {S(rWS)}, {sT0} offen sc1")
    a.label("L_h_c2")
    a(f"s_cmp_lg_u32 {sROLE}, 2"); a("s_cbranch_scc1 L_h_c3")
    a(f"s_mul_i32 {sT0}, {sRI}, 5120"); a(f"s_add_u32 {sT0}, {sT0}, {OFF_ZP}"); a(f"s_add_u32 {sT1}, {sT0}, 4096")
    for i in range(4): a(f"buffer_store_dwordx4 {V(hACC,4)}, v8, {S(rWS)}, {sT0} offen offset:{1024*i} sc1")
    a(f"buffer_store_dwordx4 {V(hACC,4)}, v8, {S(rWS)}, {sT1} offen sc1")
    a.label("L_h_c3")
    a("s_waitcnt vmcnt(0)")
    a("v_mov_b32 v9, 1"); a("v_mov_b32 v10, 0")
    a("s_mov_b64 exec, 1")
    a(f"buffer_atomic_add v9, v10, {S(rDBG)}, 0 offen sc1")
    a("s_mov_b64 exec, -1")
    a.label("L_h_noclear")
    a(f"s_cmp_eq_u32 {sROLE}, 1"); a("s_cbranch_scc1 L_h_wo")
    a(f"s_cmp_eq_u32 {sROLE}, 2"); a("s_cbranch_scc1 L_h_ffn")
    a("s_branch L_h_wait")
    def swz_off(dst, t0):
        a(f"s_lshr_b32 {sT2}, {sHW}, 1"); a(f"s_lshl_b32 {sT2}, {sT2}, 3")
        a(f"v_lshlrev_b32 v{t0}, 1, v{vG}"); a(f"v_or_b32 v{t0}, {sT2}, v{t0}"); a(f"v_xor_b32 v{t0}, v{t0}, v{vC}")
        a(f"v_lshlrev_b32 v{t0}, 4, v{t0}"); a(f"v_mul_u32_u24 v{dst}, 1280, v{vG}"); a(f"v_add_u32 v{dst}, v{dst}, v{t0}")
    def dma_loop(lbl, srdr, voff, soff0_code, sstep, m0_code, mstep, n):
        soff0_code(); m0_code()
        a(f"s_mov_b32 {sCNT}, {n}")
        a.label(lbl)
        a(f"buffer_load_dwordx4 v{voff}, {S(srdr)}, {sOFF} offen {wpol} lds")
        a(f"s_add_u32 {sOFF}, {sOFF}, {sstep}"); a(f"s_add_u32 m0, m0, {mstep}")
        a("s_waitcnt vmcnt(1)")
        a(f"s_sub_u32 {sCNT}, {sCNT}, 1"); a(f"s_cmp_lg_u32 {sCNT}, 0"); a(f"s_cbranch_scc1 {lbl}")
    a.label("L_h_wo")
    a(f"s_mul_i32 {sT0}, {sRI}, 52429"); a(f"s_lshr_b32 {sT0}, {sT0}, 18")
    a(f"s_mul_i32 {sT1}, {sT0}, 5"); a(f"s_sub_u32 {sT1}, {sRI}, {sT1}")
    a(f"s_mul_i32 {sT0}, {sT0}, {512*1280}"); a(f"s_lshl_b32 {sT1}, {sT1}, 8"); a(f"s_add_u32 {sT0}, {sT0}, {sT1}")
    srd(rA, pWO, 4096 * 1280)
    swz_off(8, 9)
    dma_loop("L_h_wo_l", rA, 8,
             lambda: (a(f"s_mul_i32 {sOFF}, {sHW}, 5120"), a(f"s_add_u32 {sOFF}, {sOFF}, {sT0}")), 4 * 5120,
             lambda: (a(f"s_lshl_b32 {sT1}, {sHW}, 10"), a(f"s_add_u32 m0, {sT1}, {L_W}")), 4096, 32)
    a("s_branch L_h_wait")
    a.label("L_h_ffn")
    a(f"v_lshrrev_b32 v8, 2, v{vLANE}"); a("v_mul_u32_u24 v8, 3456, v8")
    a(f"v_lshrrev_b32 v9, 4, v{vLANE}"); a("v_and_b32 v9, 2, v9"); a(f"v_and_b32 v10, 3, v{vLANE}"); a("v_xor_b32 v9, v9, v10")
    a("v_lshl_add_u32 v8, v9, 4, v8")
    a(f"s_lshl_b32 {sT0}, {sRI}, 6")
    srd(rA, pWG, 640 * 3456); srd(rB2, pWU, 640 * 3456)
    for nm, rr, lo in (("g", rA, L_W), ("u", rB2, L_W + 40960)):
        dma_loop(f"L_h_f{nm}_l", rr, 8,
                 lambda: (a(f"s_mul_i32 {sOFF}, {sHW}, {16*3456}"), a(f"s_add_u32 {sOFF}, {sOFF}, {sT0}")), 64 * 3456,
                 lambda: (a(f"s_lshl_b32 {sT1}, {sHW}, 10"), a(f"s_add_u32 m0, {sT1}, {lo}")), 4096, 10)
    srd(rA, pWD, 1728 * 1280)
    swz_off(8, 9)
    a(f"s_mul_i32 {sT0}, {sRI}, {32*1280}")
    for half in range(2):
        dma_loop(f"L_h_fd{half}_l", rA, 8,
                 lambda: (a(f"s_mul_i32 {sOFF}, {sHW}, 5120"), a(f"s_add_u32 {sOFF}, {sOFF}, {sT0}"), a(f"s_add_u32 {sOFF}, {sOFF}, {half*4*5120}")), 256,
                 lambda: (a(f"s_lshl_b32 {sT1}, {sHW}, 10"), a(f"s_add_u32 m0, {sT1}, {L_W+81920+half*4096}")), 8192, 5)
    a.label("L_h_wait")
    a(f"s_cmp_eq_u32 {sROLE}, 0"); a("s_cbranch_scc1 L_h_done")
    a(f"s_cmp_lg_u32 {sHW}, 0"); a("s_cbranch_scc1 L_h_done")
    a("v_mov_b32 v10, 0"); a(f"s_mov_b32 {sSP}, {SPIN}")
    a.label("L_h_chk")
    a(f"buffer_load_dword v9, v10, {S(rDBG)}, 0 offen sc1")
    a("s_waitcnt vmcnt(0)")
    a(f"v_readfirstlane_b32 {sT0}, v9")
    a(f"s_sub_u32 {sSP}, {sSP}, 1"); a(f"s_cmp_eq_u32 {sSP}, 0"); a("s_cbranch_scc1 L_h_done")
    a(f"s_cmp_lt_u32 {sT0}, 256"); a("s_cbranch_scc1 L_h_chk")
    a.label("L_h_done")
    a("s_waitcnt vmcnt(0)")
    stamp(2)
    a("s_barrier")

    a.label("L_tail")
    a(f"s_cmp_eq_u32 {sROLE}, 1"); a("s_cbranch_scc1 L_R")
    a(f"s_cmp_eq_u32 {sROLE}, 2"); a("s_cbranch_scc1 L_F")
    a(f"s_cmp_eq_u32 {sROLE}, 3"); a("s_cbranch_scc1 L_O")
    a("s_branch L_end")
    def poll(lbl, loads, regs, tmp):
        a(f"s_mov_b32 {sSP}, {SPIN}")
        a.label(lbl)
        for l in loads: a(l)
        a(f"s_sub_u32 {sSP}, {sSP}, 1")
        a("s_waitcnt vmcnt(0)")
        rs = list(regs)
        a(f"v_max_u32 v{tmp}, v{rs[0]}, v{rs[1]}")
        rs = rs[2:]
        while len(rs) >= 2:
            a(f"v_max3_u32 v{tmp}, v{tmp}, v{rs[0]}, v{rs[1]}"); rs = rs[2:]
        if rs: a(f"v_max_u32 v{tmp}, v{tmp}, v{rs[0]}")
        a(f"v_cmp_eq_u32 vcc, -1, v{tmp}")
        a(f"s_cmp_eq_u32 {sSP}, 0"); a(f"s_cbranch_scc1 {lbl}_x")
        a(f"s_cbranch_vccnz {lbl}")
        a.label(lbl + "_x")
    def tr_addr(dst, t0, t1, cg_base_sgpr, pitch_shift):
        a(f"v_lshrrev_b32 v{t0}, 2, v{vLANE}"); a(f"v_and_b32 v{t0}, 7, v{t0}")
        a(f"v_lshlrev_b32 v{t0}, 1, v{t0}")
        a(f"v_bfe_u32 v{t1}, v{vLANE}, 1, 1"); a(f"v_add_u32 v{t1}, {cg_base_sgpr}, v{t1}"); a(f"v_xor_b32 v{t0}, v{t0}, v{t1}")
        a(f"v_lshlrev_b32 v{t0}, 4, v{t0}")
        a(f"v_and_b32 v{t1}, 1, v{vLANE}"); a(f"v_lshl_add_u32 v{t0}, v{t1}, 3, v{t0}")
        a(f"v_bfe_u32 v{t1}, v{vLANE}, 2, 2"); a(f"v_lshl_add_u32 v{t1}, v{vG}, 3, v{t1}")
        a(f"v_lshl_add_u32 v{dst}, v{t1}, 8, v{t0}")
    a.label("L_R")
    tF = 64; tO = 128; tA = 8; tD = 16
    a(f"s_lshl_b32 {sT0}, {sWAVE}, 1")
    tr_addr(tA, tA + 1, tA + 2, sT0, 8)
    a(f"v_add_u32 v{tA}, {L_W}, v{tA}"); a(f"v_add_u32 v{tA+1}, 65536, v{tA}")
    for ks in range(16):
        for hh in range(2):
            a(f"ds_read_b64_tr_b16 {V(tF+4*ks+2*hh,2)}, v{tA+(ks>>3)} offset:{(ks&7)*8192+hh*1024}")
        if ks % 4 == 3: a("s_waitcnt lgkmcnt(0)")
    a(f"s_mul_i32 {sT0}, {sRI}, 52429"); a(f"s_lshr_b32 {sT0}, {sT0}, 18")
    a(f"s_mul_i32 {sT1}, {sT0}, 5"); a(f"s_sub_u32 {sT1}, {sRI}, {sT1}")
    a(f"s_lshr_b32 {sT2}, {sWAVE}, 2"); a(f"s_lshl_b32 {sT2}, {sT2}, 5"); a(f"s_and_b32 {sT3}, {sWAVE}, 3"); a(f"s_add_u32 {sT2}, {sT2}, {sT3}")
    a(f"s_lshl_b32 {sT3}, {sT0}, 2"); a(f"s_add_u32 {sT2}, {sT2}, {sT3}")
    a(f"s_lshl_b32 {sOFF}, {sT2}, 11")
    a(f"s_lshl_b32 {sCNT}, {sT2}, 5"); a(f"s_add_u32 {sCNT}, {sCNT}, {OFF_ST}")
    a(f"s_mul_i32 {sT0}, {sT0}, 5120"); a(f"s_lshl_b32 {sT1}, {sT1}, 9"); a(f"s_add_u32 {sT0}, {sT0}, {sT1}"); a(f"s_add_u32 {sT0}, {sT0}, {OFF_YP}")
    a(f"s_lshl_b32 {sT1}, {sWAVE}, 6"); a(f"s_add_u32 {sT0}, {sT0}, {sT1}")
    a(f"v_lshlrev_b32 v{tA+2}, 3, v{vLANE}"); a(f"v_mov_b32 v{tA+3}, 0")
    a(f"s_lshr_b32 {sT2}, {sWAVE}, 2"); a(f"s_mul_i32 {sT2}, {sT2}, 1088"); a(f"s_and_b32 {sT3}, {sWAVE}, 3"); a(f"s_lshl_b32 {sT3}, {sT3}, 8"); a(f"s_add_u32 {sT2}, {sT2}, {sT3}")
    a(f"v_lshl_add_u32 v{tA+4}, v{vLANE}, 2, {sT2}")
    a(f"v_and_b32 v{tA+5}, 1, v{vLANE}"); a(f"v_mul_u32_u24 v{tA+5}, 1088, v{tA+5}"); a(f"v_lshl_add_u32 v{tA+5}, v{vG}, 4, v{tA+5}")
    a(f"v_mul_u32_u24 v{tA+6}, 2560, v{vC}"); a(f"v_lshl_add_u32 v{tA+6}, v{vG}, 4, v{tA+6}")
    a(f"v_cmp_gt_u32 {sM0}, 2, v{vC}")
    a(f"s_mov_b32 {sT3}, {f32(LOG2E)}")
    stamp(5)
    loads = [f"buffer_load_dwordx2 {V(tD+2*s,2)}, v{tA+2}, {S(rWS)}, {sOFF} offen offset:{512*s} sc1" for s in range(4)]
    loads += [f"buffer_load_dwordx4 {V(tD+8+4*i,4)}, v{tA+3}, {S(rWS)}, {sCNT} offen offset:{16*i} sc1" for i in range(2)]
    poll("L_R_poll", loads, range(tD, tD + 16), tD + 16)
    stamp(6)
    st = tD + 8; tM = tD + 16
    a(f"v_max_f32 v{tM}, v{st}, v{st+2}"); a(f"v_max3_f32 v{tM}, v{tM}, v{st+4}, v{st+6}")
    for s in range(4): a(f"v_sub_f32 v{st+2*s}, v{st+2*s}, v{tM}")
    for s in range(4): a(f"v_mul_f32 v{st+2*s}, {sT3}, v{st+2*s}")
    for s in range(4): a(f"v_exp_f32 v{st+2*s}, v{st+2*s}")
    a(f"v_mul_f32 v{tM}, v{st}, v{st+1}")
    a(f"v_mul_f32 v{tM+1}, v{st}, v{tD}"); a(f"v_mul_f32 v{tM+2}, v{st}, v{tD+1}")
    for s in range(1, 4):
        a(f"v_fmac_f32 v{tM}, v{st+2*s}, v{st+2*s+1}")
        a(f"v_fmac_f32 v{tM+1}, v{st+2*s}, v{tD+2*s}"); a(f"v_fmac_f32 v{tM+2}, v{st+2*s}, v{tD+2*s+1}")
    a(f"v_rcp_f32 v{tM}, v{tM}")
    a(f"v_mul_f32 v{tM+1}, v{tM+1}, v{tM}"); a(f"v_mul_f32 v{tM+2}, v{tM+2}, v{tM}")
    a(f"v_cvt_pk_bf16_f32 v{tM+1}, v{tM+1}, v{tM+2}")
    a(f"ds_write_b32 v{tA+4}, v{tM+1} offset:{L_OB}")
    a("s_waitcnt lgkmcnt(0)")
    a("s_barrier")
    for ks in range(16): a(f"ds_read_b128 {V(tO+4*ks,4)}, v{tA+5} offset:{L_OB+64*ks}")
    for r in range(4): a(f"v_mov_b32 v{tD+r}, 0")
    for ks in range(16):
        a(f"s_waitcnt lgkmcnt({min(15-ks,15)})")
        a(f"v_mfma_f32_16x16x32_bf16 {V(tD,4)}, {V(tF+4*ks,4)}, {V(tO+4*ks,4)}, {V(tD,4)}")
    a(f"s_mov_b64 exec, {sM0}")
    a(f"buffer_store_dwordx4 {V(tD,4)}, v{tA+6}, {S(rWS)}, {sT0} offen sc1")
    a("s_mov_b64 exec, -1")
    stamp(7)
    a("s_branch L_end")
    a.label("L_F")
    fG = 64; fU = 84; fD = 104; fB = 124; fY = 16; fX = 48; fH = 52; fT = 56; fA = 8
    a(f"s_lshr_b32 {sT0}, {sWAVE}, 2"); a(f"s_and_b32 {sT1}, {sWAVE}, 3")
    a(f"s_mul_i32 {sT2}, {sT1}, 160")
    a(f"v_lshl_add_u32 v{fA}, v{vLANE}, 2, {sT2}")
    a(f"v_cmp_gt_u32 {sM0}, 40, v{vLANE}")
    a(f"v_cndmask_b32 v{fA}, 0, v{fA}, {sM0}")
    a(f"v_lshlrev_b32 v{fA+1}, 1, v{fA}")
    a(f"s_mul_i32 {sT2}, {sT0}, 1280")
    a(f"buffer_load_dwordx2 {V(fX,2)}, v{fA+1}, {S(rX)}, {sT2} offen")
    a(f"v_lshlrev_b32 v{fA+2}, 2, v{fA}")
    a(f"s_mul_i32 {sOFF}, {sT0}, 2560"); a(f"s_add_u32 {sOFF}, {sOFF}, {OFF_YP}")
    a(f"s_mul_i32 {sT2}, {sT0}, 1344"); a(f"v_add_u32 v{fA+1}, {sT2}, v{fA+1}")
    a(f"s_and_b32 {sT2}, {sWAVE}, 1"); a(f"s_lshl_b32 {sT2}, {sT2}, 1")
    a(f"v_bfe_u32 v{fT}, v{vLANE}, 1, 1"); a(f"v_add_u32 v{fT}, {sT2}, v{fT}")
    a(f"v_and_b32 v{fT+1}, 1, v{vG}"); a(f"v_lshlrev_b32 v{fT+1}, 1, v{fT+1}"); a(f"v_xor_b32 v{fT}, v{fT}, v{fT+1}")
    a(f"v_lshlrev_b32 v{fT}, 4, v{fT}"); a(f"v_and_b32 v{fT+1}, 1, v{vLANE}"); a(f"v_lshl_add_u32 v{fT}, v{fT+1}, 3, v{fT}")
    a(f"v_bfe_u32 v{fT+1}, v{vLANE}, 2, 2"); a(f"v_lshl_add_u32 v{fT+1}, v{vG}, 3, v{fT+1}"); a(f"v_lshl_add_u32 v{fT}, v{fT+1}, 6, v{fT}")
    a(f"s_lshr_b32 {sT2}, {sWAVE}, 1"); a(f"s_mul_i32 {sT3}, {sT2}, {160*64}"); a(f"s_add_u32 {sT3}, {sT3}, {L_W}")
    a(f"v_add_u32 v{fT}, {sT3}, v{fT}")
    for ks in range(5):
        for hh in range(2):
            a(f"ds_read_b64_tr_b16 {V(fG+4*ks+2*hh,2)}, v{fT} offset:{ks*2048+hh*256}")
    a("s_waitcnt lgkmcnt(0)")
    for ks in range(5):
        for hh in range(2):
            a(f"ds_read_b64_tr_b16 {V(fU+4*ks+2*hh,2)}, v{fT} offset:{40960+ks*2048+hh*256}")
    a("s_waitcnt lgkmcnt(0)")
    a(f"v_and_b32 v{fA+3}, 1, v{vLANE}"); a(f"v_mul_u32_u24 v{fA+3}, 1344, v{fA+3}"); a(f"v_lshl_add_u32 v{fA+3}, v{vG}, 4, v{fA+3}")
    a(f"s_mul_i32 {sT3}, {sT2}, 320"); a(f"v_add_u32 v{fA+3}, {sT3}, v{fA+3}")
    a(f"s_lshl_b32 {sT2}, {sT2}, 9"); a(f"s_and_b32 {sT3}, {sWAVE}, 1"); a(f"s_lshl_b32 {sT3}, {sT3}, 6"); a(f"s_add_u32 {sT2}, {sT2}, {sT3}")
    a(f"v_lshlrev_b32 v{fA+4}, 7, v{vC}"); a(f"v_lshl_add_u32 v{fA+4}, v{vG}, 4, v{fA+4}"); a(f"v_add_u32 v{fA+4}, {sT2}, v{fA+4}")
    for i in range(5):
        a(f"s_mul_i32 {sT2}, {sWAVE}, 5"); a(f"s_add_u32 {sT2}, {sT2}, {i}")
        a(f"s_and_b32 {sT3}, {sT2}, 7"); a(f"s_lshl_b32 {sT3}, {sT3}, 1")
        tr_addr(fT, fT + 1, fT + 2, sT3, 8)
        a(f"s_lshr_b32 {sT2}, {sT2}, 3"); a(f"s_lshl_b32 {sT2}, {sT2}, 13"); a(f"s_add_u32 {sT2}, {sT2}, {L_W+81920}")
        a(f"v_add_u32 v{fT}, {sT2}, v{fT}")
        for hh in range(2): a(f"ds_read_b64_tr_b16 {V(fD+4*i+2*hh,2)}, v{fT} offset:{hh*1024}")
        a("s_waitcnt lgkmcnt(0)")
    a(f"v_lshlrev_b32 v{fA+5}, 2, v{vLANE}")
    a(f"s_mul_i32 {sT2}, {sWAVE}, 192"); a(f"s_add_u32 {sT2}, {sT2}, {L_AC}")
    a(f"v_lshl_add_u32 v{fA+6}, v{vLANE}, 1, {sT2}")
    a(f"v_and_b32 v{fA+7}, 1, v{vLANE}"); a(f"v_lshlrev_b32 v{fA+7}, 6, v{fA+7}"); a(f"v_lshl_add_u32 v{fA+7}, v{vG}, 4, v{fA+7}"); a(f"v_add_u32 v{fA+7}, {sT2}, v{fA+7}")
    a(f"v_mul_u32_u24 v{fT+7}, 2560, v{vC}"); a(f"v_lshl_add_u32 v{fT+7}, v{vG}, 4, v{fT+7}")
    a(f"s_mul_i32 {sCNT}, {sRI}, 5120"); a(f"s_mul_i32 {sT2}, {sWAVE}, 320"); a(f"s_add_u32 {sCNT}, {sCNT}, {sT2}"); a(f"s_add_u32 {sCNT}, {sCNT}, {OFF_ZP}")
    a(f"v_cmp_gt_u32 {sM1}, 2, v{vC}")
    a("s_waitcnt vmcnt(0)")
    a(f"v_and_b32 v{fX+3}, 0xffff0000, v{fX+1}"); a(f"v_lshlrev_b32 v{fX+2}, 16, v{fX+1}")
    a(f"v_and_b32 v{fX+1}, 0xffff0000, v{fX}"); a(f"v_lshlrev_b32 v{fX}, 16, v{fX}")
    for kb in range(1, 8): a(f"s_add_u32 s{89+kb}, {sOFF}, {kb*5120}")
    stamp(5)
    loads = [f"buffer_load_dwordx4 {V(fY+4*kb,4)}, v{fA+2}, {S(rWS)}, {sOFF if kb == 0 else 's%d' % (89+kb)} offen sc1" for kb in range(8)]
    poll("L_F_poll", loads, range(fY, fY + 32), fT)
    stamp(6)
    for st_ in (4, 8, 16):
        for b_ in range(0, 32, 2 * st_):
            for r in range(4): a(f"v_add_f32 v{fY+b_+r}, v{fY+b_+r}, v{fY+b_+r+st_}")
    for r in range(4): bf16r(f"v{fY+r}", f"v{fY+r}")
    for r in range(4): a(f"v_add_f32 v{fH+r}, v{fX+r}, v{fY+r}")
    for r in range(4): bf16r(f"v{fH+r}", f"v{fH+r}")
    a(f"v_readlane_b32 {sT2}, v{fH}, 40")
    for r in range(4): a(f"v_subrev_f32 v{fY+r}, {sT2}, v{fH+r}")
    for r in range(4): a(f"v_cndmask_b32 v{fY+r}, 0, v{fY+r}, {sM0}")
    a(f"v_add_f32 v{fT}, v{fY}, v{fY+1}"); a(f"v_mul_f32 v{fT+1}, v{fY}, v{fY}")
    a(f"v_add_f32 v{fT}, v{fT}, v{fY+2}"); a(f"v_fmac_f32 v{fT+1}, v{fY+1}, v{fY+1}")
    a(f"v_add_f32 v{fT}, v{fT}, v{fY+3}"); a(f"v_fmac_f32 v{fT+1}, v{fY+2}, v{fY+2}")
    a(f"v_fmac_f32 v{fT+1}, v{fY+3}, v{fY+3}")
    wave_reduce("v_add_f32", [fT, fT + 1], [fT + 2, fT + 3])
    a(f"s_lshl_b32 {sT3}, {sWAVE}, 3"); a(f"v_mov_b32 v{fT+2}, {sT3}")
    a(f"ds_write_b64 v{fT+2}, {V(fT,2)} offset:{L_SF}")
    a(f"s_lshl_b32 {sT3}, {sT0}, 5"); a(f"v_mov_b32 v{fT+2}, {sT3}")
    a("s_waitcnt lgkmcnt(0)")
    a("s_barrier")
    a(f"ds_read_b128 {V(fY,4)}, v{fT+2} offset:{L_SF}"); a(f"ds_read_b128 {V(fY+4,4)}, v{fT+2} offset:{L_SF+16}")
    a("s_waitcnt lgkmcnt(0)")
    a(f"v_add_f32 v{fY}, v{fY}, v{fY+2}"); a(f"v_add_f32 v{fY+1}, v{fY+1}, v{fY+3}")
    a(f"v_add_f32 v{fY+4}, v{fY+4}, v{fY+6}"); a(f"v_add_f32 v{fY+5}, v{fY+5}, v{fY+7}")
    a(f"v_add_f32 v{fY}, v{fY}, v{fY+4}"); a(f"v_add_f32 v{fY+1}, v{fY+1}, v{fY+5}")
    a(f"v_mul_f32 v{fY}, {f32(1/640)}, v{fY}"); a(f"v_mul_f32 v{fY+1}, {f32(1/640)}, v{fY+1}")
    a(f"v_fma_f32 v{fY+1}, -v{fY}, v{fY}, v{fY+1}"); a(f"v_max_f32 v{fY+1}, 0, v{fY+1}")
    a(f"v_add_f32 v{fY}, {sT2}, v{fY}")
    ln_finish(fY, fY + 1, fY + 2, fY + 3)
    ln_apply([fH + r for r in range(4)], fY, fY + 1, fY + 2, [fY + 4 + r for r in range(4)])
    a(f"v_cvt_pk_bf16_f32 v{fH}, v{fH}, v{fH+1}"); a(f"v_cvt_pk_bf16_f32 v{fH+1}, v{fH+2}, v{fH+3}")
    a(f"s_mov_b64 exec, {sM0}")
    a(f"ds_write_b64 v{fA+1}, {V(fH,2)} offset:{L_HN}")
    a("s_mov_b64 exec, -1")
    a("s_waitcnt lgkmcnt(0)")
    a("s_barrier")
    for ks in range(5): a(f"ds_read_b128 {V(fB+4*ks,4)}, v{fA+3} offset:{L_HN+64*ks}")
    for r in range(8): a(f"v_mov_b32 v{fY+r}, 0")
    for ks in range(5):
        a(f"s_waitcnt lgkmcnt({4-ks})")
        a(f"v_mfma_f32_16x16x32_bf16 {V(fY,4)}, {V(fG+4*ks,4)}, {V(fB+4*ks,4)}, {V(fY,4)}")
        a(f"v_mfma_f32_16x16x32_bf16 {V(fY+4,4)}, {V(fU+4*ks,4)}, {V(fB+4*ks,4)}, {V(fY+4,4)}")
    a(f"s_mov_b64 exec, {sM1}")
    a(f"ds_write_b128 v{fA+4}, {V(fY,4)} offset:{L_PG}")
    a(f"ds_write_b128 v{fA+4}, {V(fY+4,4)} offset:{L_PG+256}")
    a("s_mov_b64 exec, -1")
    a("s_waitcnt lgkmcnt(0)")
    a("s_barrier")
    for kq in range(4):
        a(f"ds_read2st64_b32 {V(fY+8+2*kq,2)}, v{fA+5} offset0:{(L_PG+512*kq)//256} offset1:{(L_PG+512*kq+256)//256}")
    a("s_waitcnt lgkmcnt(0)")
    g_, u_ = fY + 8, fY + 9
    a(f"v_add_f32 v{g_}, v{g_}, v{g_+2}"); a(f"v_add_f32 v{u_}, v{u_}, v{u_+2}")
    a(f"v_add_f32 v{g_+4}, v{g_+4}, v{g_+6}"); a(f"v_add_f32 v{u_+4}, v{u_+4}, v{u_+6}")
    a(f"v_add_f32 v{g_}, v{g_}, v{g_+4}"); a(f"v_add_f32 v{u_}, v{u_}, v{u_+4}")
    bf16r(f"v{g_}", f"v{g_}"); bf16r(f"v{u_}", f"v{u_}")
    t_ = fY + 10
    a(f"v_mul_f32 v{t_}, v{g_}, v{g_}")
    a(f"v_mul_f32 v{t_}, {f32(0.044715)}, v{t_}")
    a(f"v_fma_f32 v{t_}, v{t_}, v{g_}, v{g_}")
    a(f"v_mul_f32 v{t_}, {f32(-2.0 * 0.7978845608028654 * LOG2E)}, v{t_}")
    a(f"v_exp_f32 v{t_}, v{t_}")
    a(f"v_add_f32 v{t_}, 1.0, v{t_}")
    a(f"v_rcp_f32 v{t_}, v{t_}")
    a(f"v_mul_f32 v{t_}, v{g_}, v{t_}")
    bf16r(f"v{t_}", f"v{t_}")
    a(f"v_mul_f32 v{t_}, v{t_}, v{u_}")
    a(f"v_cvt_pk_bf16_f32 v{t_}, v{t_}, v{t_}")
    a(f"ds_write_b16 v{fA+6}, v{t_}")
    a("s_waitcnt lgkmcnt(0)")
    a(f"ds_read_b128 {V(fB,4)}, v{fA+7}")
    a("s_waitcnt lgkmcnt(0)")
    for i in range(5):
        a(f"v_mfma_f32_16x16x32_bf16 {V(fY+4*i,4)}, {V(fD+4*i,4)}, {V(fB,4)}, 0")
    a(f"s_mov_b64 exec, {sM1}")
    for i in range(5):
        a(f"buffer_store_dwordx4 {V(fY+4*i,4)}, v{fT+7}, {S(rWS)}, {sCNT} offen offset:{64*i} sc1")
    a("s_mov_b64 exec, -1")
    stamp(7)
    a("s_branch L_end")
    a.label("L_O")
    oA = 8; oY = 16; oZ = 20; oX = 24; oT = 28
    a(f"s_lshl_b32 {sT0}, {sRI}, 5"); a(f"s_lshl_b32 {sT1}, {sWAVE}, 2"); a(f"s_add_u32 {sT0}, {sT0}, {sT1}")
    a(f"s_lshl_b32 {sT1}, {sT0}, 1")
    a(f"v_mov_b32 v{oA}, 0")
    a(f"buffer_load_dwordx2 {V(oX,2)}, v{oA}, {S(rX)}, {sT1} offen")
    a(f"s_lshl_b32 {sT0}, {sT0}, 2")
    a(f"s_add_u32 {sOFF}, {sT0}, {OFF_YP}"); a(f"s_add_u32 {sCNT}, {sT0}, {OFF_ZP}")
    a(f"v_and_b32 v{oA+1}, 7, v{vLANE}"); a(f"v_mul_u32_u24 v{oA+1}, 5120, v{oA+1}")
    a(f"v_min_u32 v{oA+2}, 53, v{vLANE}"); a(f"v_mul_u32_u24 v{oA+2}, 5120, v{oA+2}")
    a(f"v_cmp_gt_u32 {sM0}, 54, v{vLANE}")
    srd(rA, pOUT, 2560)
    poll("L_O_poll1", [f"buffer_load_dwordx4 {V(oY,4)}, v{oA+1}, {S(rWS)}, {sOFF} offen sc1"], range(oY, oY + 4), oT)
    for mod in ("quad_perm:[1,0,3,2]", "quad_perm:[2,3,0,1]", "row_half_mirror"):
        for r in range(4): a(f"v_add_f32_dpp v{oY+r}, v{oY+r}, v{oY+r} {mod} {DPPF}")
    a(f"v_and_b32 v{oX+3}, 0xffff0000, v{oX+1}"); a(f"v_lshlrev_b32 v{oX+2}, 16, v{oX+1}")
    a(f"v_and_b32 v{oX+1}, 0xffff0000, v{oX}"); a(f"v_lshlrev_b32 v{oX}, 16, v{oX}")
    for r in range(4): bf16r(f"v{oY+r}", f"v{oY+r}")
    for r in range(4): a(f"v_add_f32 v{oY+r}, v{oX+r}, v{oY+r}")
    for r in range(4): bf16r(f"v{oY+r}", f"v{oY+r}")
    stamp(5)
    poll("L_O_poll2", [f"buffer_load_dwordx4 {V(oZ,4)}, v{oA+2}, {S(rWS)}, {sCNT} offen sc1"], range(oZ, oZ + 4), oT)
    stamp(6)
    for r in range(4): a(f"v_cndmask_b32 v{oZ+r}, 0, v{oZ+r}, {sM0}")
    wave_reduce("v_add_f32", [oZ + r for r in range(4)], [oT + r for r in range(4)])
    for r in range(4): bf16r(f"v{oZ+r}", f"v{oZ+r}")
    for r in range(4): a(f"v_add_f32 v{oZ+r}, v{oY+r}, v{oZ+r}")
    a(f"v_cvt_pk_bf16_f32 v{oZ}, v{oZ}, v{oZ+1}"); a(f"v_cvt_pk_bf16_f32 v{oZ+1}, v{oZ+2}, v{oZ+3}")
    a("s_mov_b64 exec, 1")
    a(f"buffer_store_dwordx2 {V(oZ,2)}, v{oA}, {S(rA)}, {sT1} offen")
    a("s_mov_b64 exec, -1")
    stamp(7)
    a.label("L_end")
    a("s_endpgm")

    hdr = open("sequential_preLN__gqa_block_cached__geglu_ffn__decode.s.ref").read().split("; Override launch")[0]
    return hdr + f"""; @launch grid=(256,1,1) block=(512,1,1) lds={LDS_BYTES}
.amdgcn_target "amdgcn-amd-amdhsa--gfx950"
.text
.globl {NAME}
.p2align 8
.type {NAME},@function
{NAME}:
""" + a.finalize() + f""".section .rodata,"a"
.p2align 6
.amdhsa_kernel {NAME}
  .amdhsa_next_free_vgpr 256
  .amdhsa_next_free_sgpr 102
  .amdhsa_accum_offset 256
  .amdhsa_group_segment_fixed_size 0
  .amdhsa_kernarg_size 96
  .amdhsa_user_sgpr_count 2
  .amdhsa_user_sgpr_kernarg_segment_ptr 1
  .amdhsa_system_sgpr_workgroup_id_x 1
  .amdhsa_float_denorm_mode_32 3
.end_amdhsa_kernel
"""

if __name__ == "__main__":
    kw = eval("dict(%s)" % (sys.argv[2] if len(sys.argv) > 2 else ""))
    open(sys.argv[1], "w").write(gen(**kw))
```

```python
import sys, struct
sys.path.insert(0, "gen")
from asmlib import Asm

NAME = "sequential_preLN__gqa_block_cached__geglu_ffn__decode_kernel"
def f32(x): return "0x%08x" % struct.unpack("<I", struct.pack("<f", x))[0]

OFF_OP = 0x0
OFF_ST = 0x20000
OFF_YP = 0x20800
OFF_ZP = 0x2A800
CLR_END = 0x6E000
OFF_TS = 0x100000
WS_SIZE = 0x200000
L_QP = 0
L_OP = 2048
L_ST = 4096
L_CNT = 4160
L_OB = 4352
L_SF = 6656
L_HN = 6912
L_PG = 9728
L_AC = 11776
L_W = 16384
LDS_BYTES = L_W + 131072
R0_ID, F0_ID, O0_ID, C0_ID = 0, 40, 104, 248
LOG2E = 1.4426950408889634
SPIN = 40000

def gen(R=32, D=5, DP=6, rot=0, stamps=False, wqpol="nt", wpol="nt", kvpol="nt", NPRE=12, trigR=3, trigF=3, dmad=31,
        dry=True, norole=False, noq=False, nomimic=0):
    a = Asm()
    NIT = 128 // R
    assert D < R and DP < R
    G = R // 16
    sWAVE, sH, sB, sS, sREC = "s3", "s6", "s7", "s8", "s9"
    pX, pK, pV, pWQ, pWO, pWG, pWU, pWD, pOUT, pDBG, pWS = 16, 18, 20, 22, 24, 28, 30, 32, 34, 36, 38
    rWS, rKV, rA, rB2, rX, rDBG = 40, 44, 48, 52, 56, 60
    sOFF, sCNT, sT0, sT1, sT2, sT3 = "s64", "s65", "s66", "s67", "s68", "s69"
    sVB = 70
    sM0, sM1, sM2 = "s[72:73]", "s[74:75]", "s[76:77]"
    sFULL = "s[78:79]"
    sROLE, sRI, sSP, sDRY, sHW, sSTEP = "s80", "s81", "s82", "s83", "s10", "s11"
    def srd(r, p, size, off=None):
        if off is None:
            a(f"s_mov_b32 s{r}, s{p}"); a(f"s_mov_b32 s{r+1}, s{p+1}")
        else:
            a(f"s_add_u32 s{r}, s{p}, {off}"); a(f"s_addc_u32 s{r+1}, s{p+1}, 0")
        a(f"s_mov_b32 s{r+2}, {size}"); a(f"s_mov_b32 s{r+3}, 0x20000")
    def S(r): return f"s[{r}:{r+3}]"
    def V(r, n=1): return f"v{r}" if n == 1 else f"v[{r}:{r+n-1}]"
    def exset(m): a(f"s_and_b64 exec, {sFULL}, {m}")
    def exfull(): a(f"s_mov_b64 exec, {sFULL}")
    nb = [0]
    def dbar():
        nb[0] += 1
        a(f"s_cbranch_execz L_nb{nb[0]}"); a("s_barrier"); a.label(f"L_nb{nb[0]}")
    def stamp(idx):
        if not stamps: return
        a("s_memrealtime s[84:85]")
        a("s_lshl_b32 s86, s2, 3"); a(f"s_add_u32 s86, s86, {sWAVE}"); a("s_lshl_b32 s86, s86, 7"); a(f"s_add_u32 s86, s86, {OFF_TS + idx*8}")
        a("s_waitcnt lgkmcnt(0)")
        a("v_mov_b32 v252, s84"); a("v_mov_b32 v253, s85"); a("v_mov_b32 v254, 0")
        exset(1)
        a(f"buffer_store_dwordx2 v[252:253], v254, {S(rWS)}, s86 offen")
        exfull()
    def bf16r(dst, src):
        a(f"v_cvt_pk_bf16_f32 {dst}, {src}, {src}"); a(f"v_and_b32 {dst}, 0xffff0000, {dst}")
    DPPF = "row_mask:0xf bank_mask:0xf"
    def wave_reduce(op, regs, tmp):
        for mod in ("quad_perm:[1,0,3,2]", "quad_perm:[2,3,0,1]", "row_half_mirror", "row_mirror"):
            for r in regs: a(f"{op}_dpp v{r}, v{r}, v{r} {mod} {DPPF}")
        for sw in ("v_permlane16_swap_b32", "v_permlane32_swap_b32"):
            for r, t in zip(regs, tmp): a(f"v_mov_b32 v{t}, v{r}")
            for r, t in zip(regs, tmp): a(f"{sw} v{r}, v{t}")
            for r, t in zip(regs, tmp): a(f"{op} v{r}, v{r}, v{t}")

    vLANE, vG, vC = 1, 2, 3
    vMASK = 4
    def common_setup():
        a(f"v_lshrrev_b32 v{vG}, 4, v{vLANE}"); a(f"v_and_b32 v{vC}, 15, v{vLANE}")
        a(f"s_mov_b32 {sROLE}, 0"); a(f"s_mov_b32 {sRI}, s2")
        a(f"s_cmp_lt_u32 s2, {F0_ID}"); a(f"s_cselect_b32 {sROLE}, 1, {sROLE}")
        a(f"s_sub_u32 {sT0}, s2, {F0_ID}")
        a(f"s_and_b32 {sT1}, {sT0}, 7"); a(f"s_lshr_b32 {sT2}, {sT0}, 4"); a(f"s_lshl_b32 {sT2}, {sT2}, 3"); a(f"s_add_u32 {sT1}, {sT1}, {sT2}")
        a(f"s_lshl_b32 {sT1}, {sT1}, 1"); a(f"s_lshr_b32 {sT2}, {sT0}, 3"); a(f"s_and_b32 {sT2}, {sT2}, 1"); a(f"s_add_u32 {sT1}, {sT1}, {sT2}")
        a(f"s_cmp_lt_u32 {sT0}, 64"); a(f"s_cselect_b32 {sT1}, {sT1}, 99")
        a(f"s_cmp_lt_u32 {sT1}, 54"); a(f"s_cselect_b32 {sROLE}, 2, {sROLE}"); a(f"s_cselect_b32 {sRI}, {sT1}, {sRI}")
        a(f"s_sub_u32 {sT0}, s2, {O0_ID}")
        a(f"s_cmp_lt_u32 {sT0}, 40"); a(f"s_cselect_b32 {sROLE}, 3, {sROLE}"); a(f"s_cselect_b32 {sRI}, {sT0}, {sRI}")
        if norole: a(f"s_mov_b32 {sROLE}, 0")
        a(f"v_and_b32 v9, 1, v{vC}"); a("v_lshlrev_b32 v9, 4, v9"); a("v_mov_b32 v7, 0xffff"); a("v_lshlrev_b32 v9, v9, v7")
        a(f"v_lshrrev_b32 v7, 1, v{vC}")
        for r in range(4):
            a(f"v_cmp_eq_u32 vcc, {r}, v7"); a(f"v_cndmask_b32 v{vMASK+r}, 0, v9, vcc")
    a("s_cmp_ge_u32 s2, 256"); a("s_cbranch_scc1 L_exit")
    a("s_load_dwordx16 s[16:31], s[0:1], 0")
    a("s_load_dwordx8 s[32:39], s[0:1], 64")
    a("v_lshrrev_b32 v2, 6, v0")
    a(f"v_and_b32 v{vLANE}, 63, v0")
    a(f"v_readfirstlane_b32 {sWAVE}, v2")
    a("s_and_b32 s4, s2, 7"); a("s_lshr_b32 s5, s2, 3")
    a(f"s_lshr_b32 {sH}, s5, 3"); a(f"s_lshl_b32 {sH}, {sH}, 3"); a(f"s_add_u32 {sH}, {sH}, s4")
    a(f"s_lshr_b32 {sB}, s5, 2"); a(f"s_and_b32 {sB}, {sB}, 1")
    a(f"s_and_b32 {sS}, s5, 3")
    a(f"s_lshl_b32 {sREC}, {sB}, 5"); a(f"s_add_u32 {sREC}, {sREC}, {sH}"); a(f"s_lshl_b32 {sREC}, {sREC}, 2"); a(f"s_add_u32 {sREC}, {sREC}, {sS}")
    a(f"s_mov_b64 {sFULL}, -1"); a(f"s_mov_b32 {sDRY}, 0")
    common_setup()
    a(f"s_lshl_b32 {sT0}, {sREC}, 19")
    a(f"s_lshl_b32 {sT1}, {sH}, 8")
    a(f"s_sub_u32 {sHW}, {sWAVE}, 4")
    a("s_waitcnt lgkmcnt(0)")
    srd(rKV, pK, 0x80000, sT0)
    srd(rX, pX, 2560)
    srd(rA, pWQ, 0 if noq else 640 * 8192 - 31 * 256, sT1)
    srd(rWS, pWS, WS_SIZE)
    srd(rDBG, pDBG, 256)
    a(f"s_add_u32 s{sVB}, s{pV}, {sT0}"); a(f"s_addc_u32 s{sVB+1}, s{pV+1}, 0")
    srd(rB2, pWS, CLR_END)
    a(f"s_cmp_ge_u32 {sWAVE}, 4"); a("s_cbranch_scc1 L_helper")

    vOFF = 8; vQ = 10; vSC = 14; vACC = 22; vBOP = 26; vMX = 34; vL = 35; vT = 36; vFLG = 40; vP = 48; vRING = 64
    stamp(0)
    a(f"v_lshlrev_b32 v{vOFF}, 4, v0")
    a(f"s_mul_i32 {sOFF}, s2, {rot}"); a(f"s_and_b32 {sOFF}, {sOFF}, 0x7ffff")
    a(f"s_movk_i32 {sSTEP}, 4096")
    def ld(slot):
        a(f"buffer_load_dwordx4 {V(vRING+4*slot,4)}, v{vOFF}, {S(rKV)}, {sOFF} offen {kvpol}")
        a(f"s_add_u32 {sOFF}, {sOFF}, {sSTEP}")
        if rot: a(f"s_and_b32 {sOFF}, {sOFF}, 0x7ffff")
    for i in range(R):
        if i >= DP: a(f"s_waitcnt vmcnt({DP-1})")
        ld(i)
    a(f"v_and_b32 v{vT}, 3, v{vC}")
    a(f"v_cmp_eq_u32 {sM0}, 1, v{vT}"); a(f"v_cmp_eq_u32 {sM1}, 2, v{vT}"); a(f"v_cmp_eq_u32 {sM2}, 3, v{vT}")
    a(f"v_mov_b32 v{vMX}, 0xff800000")
    a(f"v_lshlrev_b32 v{vT}, 5, v{vC}")
    a(f"v_lshlrev_b32 v{vFLG+1}, 2, v{vLANE}"); a(f"v_and_b32 v{vFLG+1}, 0x7f, v{vFLG+1}")
    stamp(8)
    a("s_barrier")
    qa = [vP, vP + 8, vSC, vBOP]
    for w in range(4):
        a(f"ds_read_b128 {V(qa[w],4)}, v{vT} offset:{L_QP+512*w}")
        a(f"ds_read_b128 {V(qa[w]+4,4)}, v{vT} offset:{L_QP+512*w+16}")
    a("s_waitcnt lgkmcnt(0)")
    for e in range(8):
        a(f"v_add_f32 v{qa[0]+e}, v{qa[0]+e}, v{qa[1]+e}"); a(f"v_add_f32 v{qa[2]+e}, v{qa[2]+e}, v{qa[3]+e}")
    for e in range(8):
        a(f"v_add_f32 v{qa[0]+e}, v{qa[0]+e}, v{qa[2]+e}")
    for r in range(4):
        a(f"v_cvt_pk_bf16_f32 v{vQ+r}, v{qa[0]+2*r}, v{qa[0]+2*r+1}")
    stamp(1)
    a(f"s_mov_b32 {sCNT}, {NIT}")
    a(f"s_mov_b32 {sT3}, {f32(128 ** -0.5)}")
    a.label("L_kloop")
    a(f"s_cmp_eq_u32 {sCNT}, 1")
    a(f"s_cselect_b32 s{rKV}, s{sVB}, s{rKV}"); a(f"s_cselect_b32 s{rKV+1}, s{sVB+1}, s{rKV+1}")
    if not rot: a(f"s_cselect_b32 {sOFF}, 0, {sOFF}")
    for g in range(G):
        for j in range(16):
            sl = 16 * g + j; k = vRING + 4 * sl
            a(f"v_dot2_f32_bf16 v{vP+j}, v{k}, v{vQ}, 0")
            for r in range(1, 4): a(f"v_dot2_f32_bf16 v{vP+j}, v{k+r}, v{vQ+r}, v{vP+j}")
            a(f"s_waitcnt vmcnt({D-1})")
            ld(sl)
        for j in range(8):
            a(f"v_add_f32_dpp v{vP+j}, v{vP+j}, v{vP+j} row_ror:8 row_mask:0xf bank_mask:0x3")
        for j in range(8):
            a(f"v_add_f32_dpp v{vP+j}, v{vP+j+8}, v{vP+j+8} row_ror:8 row_mask:0xf bank_mask:0xc")
        for j in range(4):
            a(f"v_add_f32_dpp v{vP+j}, v{vP+j}, v{vP+j} row_shl:4 row_mask:0xf bank_mask:0x5")
        for j in range(4):
            a(f"v_add_f32_dpp v{vP+j}, v{vP+j+4}, v{vP+j+4} row_shr:4 row_mask:0xf bank_mask:0xa")
        for mod in ("quad_perm:[2,3,0,1]", "quad_perm:[1,0,3,2]"):
            for j in range(4): a(f"v_add_f32_dpp v{vP+j}, v{vP+j}, v{vP+j} {mod} {DPPF}")
        a(f"v_cndmask_b32 v{vP}, v{vP}, v{vP+1}, {sM0}")
        a(f"v_cndmask_b32 v{vP}, v{vP}, v{vP+2}, {sM1}")
        a(f"v_cndmask_b32 v{vP}, v{vP}, v{vP+3}, {sM2}")
        if nomimic < 2: bf16r(f"v{vP}", f"v{vP}")
        a(f"v_mul_f32 v{vP}, {sT3}, v{vP}")
        for i in range(7): a(f"v_mov_b32 v{vSC+i}, v{vSC+i+1}")
        if nomimic < 1: bf16r(f"v{vSC+7}", f"v{vP}")
        else: a(f"v_mov_b32 v{vSC+7}, v{vP}")
        a(f"v_max_f32 v{vMX}, v{vMX}, v{vSC+7}")
    a(f"s_sub_u32 {sCNT}, {sCNT}, 1"); a(f"s_cmp_lg_u32 {sCNT}, 0"); a("s_cbranch_scc1 L_kloop")
    stamp(2)
    if 2 in (trigR, trigF): a("s_barrier")
    a.label("L_kend")
    a(f"buffer_load_dword v{vFLG}, v{vFLG+1}, {S(rDBG)}, 0 offen sc1")
    wave_reduce("v_max_f32", [vMX], [vT])
    a(f"s_mov_b32 {sT3}, {f32(LOG2E)}")
    a(f"v_mov_b32 v{vL}, 0")
    for i in range(8): a(f"v_sub_f32 v{vSC+i}, v{vSC+i}, v{vMX}")
    for i in range(8): a(f"v_mul_f32 v{vSC+i}, {sT3}, v{vSC+i}")
    for i in range(8): a(f"v_exp_f32 v{vSC+i}, v{vSC+i}")
    for i in range(8): a(f"v_add_f32 v{vL}, v{vL}, v{vSC+i}")
    for i in range(8): a(f"v_cvt_pk_bf16_f32 v{vSC+i}, v{vSC+i}, v{vSC+i}")
    wave_reduce("v_add_f32", [vL], [vT])
    a(f"s_lshl_b32 {sT0}, {sWAVE}, 3"); a(f"v_mov_b32 v{vT}, {sT0}")
    a(f"ds_write_b64 v{vT}, {V(vMX,2)} offset:{L_ST}")
    for r in range(4): a(f"v_mov_b32 v{vACC+r}, 0")
    a(f"v_lshlrev_b32 v{vT}, 5, v{vC}"); a(f"v_lshl_add_u32 v{vT}, v{vG}, 4, v{vT}")
    a(f"s_lshl_b32 {sT0}, {sWAVE}, 9"); a(f"v_add_u32 v{vT}, {sT0}, v{vT}")
    a(f"v_lshlrev_b32 v{vT+2}, 4, v{vLANE}"); a(f"v_and_b32 v{vT+2}, 0x1ff, v{vT+2}")
    a(f"v_mov_b32 v{vT+1}, 0"); a(f"v_mov_b32 v{vT+3}, 1")
    a(f"s_lshl_b32 {sT0}, {sREC}, 9"); a(f"s_lshl_b32 {sT1}, {sREC}, 3"); a(f"s_add_u32 {sT1}, {sT1}, {OFF_ST}")
    def vstep(sl, j, preg, wait, issue):
        k = vRING + 4 * sl; bo = vBOP + 4 * (j & 1)
        for r in range(4): a(f"v_and_b32_dpp v{bo+r}, v{preg}, v{vMASK+r} row_newbcast:{j} {DPPF}")
        if not issue and wait < D: a(f"s_waitcnt vmcnt({wait})")
        a(f"v_mfma_f32_16x16x32_bf16 {V(vACC,4)}, {V(bo,4)}, {V(k,4)}, {V(vACC,4)}")
        if issue:
            a(f"s_waitcnt vmcnt({wait})")
            ld(sl)
    a(f"s_mov_b32 {sCNT}, {NIT-1}")
    a(f"s_cmp_lg_u32 {sDRY}, 0"); a(f"s_cselect_b32 {sCNT}, 1, {sCNT}"); a(f"s_cselect_b32 s{rKV+2}, 0, s{rKV+2}")
    a.label("L_vloop")
    for g in range(G):
        for j in range(16): vstep(16 * g + j, j, vSC + g, D - 1, True)
    for i in range(8 - G): a(f"v_mov_b32 v{vSC+i}, v{vSC+i+G}")
    a(f"s_sub_u32 {sCNT}, {sCNT}, 1"); a(f"s_cmp_lg_u32 {sCNT}, 0"); a("s_cbranch_scc1 L_vloop")
    if 3 in (trigR, trigF): dbar()
    for g in range(G):
        for j in range(16):
            sl = 16 * g + j
            vstep(sl, j, vSC + g, R - 1 - sl, False)
    exset("0xffffffff")
    a(f"ds_write_b128 v{vT}, {V(vACC,4)} offset:{L_OP}")
    exset(1)
    a("s_waitcnt lgkmcnt(0)")
    a(f"ds_add_rtn_u32 v{vT+3}, v{vT+1}, v{vT+3} offset:{L_CNT}")
    exfull()
    stamp(3)
    a("s_waitcnt lgkmcnt(0)")
    a(f"v_readfirstlane_b32 {sT2}, v{vT+3}")
    a(f"s_cmp_lg_u32 {sDRY}, 0"); a(f"s_cselect_b32 {sT2}, 3, {sT2}")
    a(f"s_cmp_lg_u32 {sT2}, 3"); a("s_cbranch_scc1 L_pubdone")
    a(f"ds_read_b128 {V(vSC,4)}, v{vT+1} offset:{L_ST}"); a(f"ds_read_b128 {V(vSC+4,4)}, v{vT+1} offset:{L_ST+16}")
    for w in range(4): a(f"ds_read_b128 {V(vP+4*w,4)}, v{vT+2} offset:{L_OP+512*w}")
    a(f"v_cmp_eq_u32 vcc, 0, v{vFLG}")
    a("s_cbranch_vccz L_flgok")
    a(f"s_mov_b32 {sSP}, {SPIN}")
    a.label("L_flg")
    a(f"buffer_load_dword v{vFLG}, v{vFLG+1}, {S(rDBG)}, 0 offen sc1")
    a(f"s_sub_u32 {sSP}, {sSP}, 1")
    a("s_waitcnt vmcnt(0)")
    a(f"v_cmp_eq_u32 vcc, 0, v{vFLG}")
    a(f"s_cmp_eq_u32 {sSP}, 0"); a("s_cbranch_scc1 L_flgok")
    a("s_cbranch_vccnz L_flg")
    a.label("L_flgok")
    a("s_waitcnt lgkmcnt(4)")
    a(f"v_max_f32 v{vMX}, v{vSC}, v{vSC+2}"); a(f"v_max3_f32 v{vMX}, v{vMX}, v{vSC+4}, v{vSC+6}")
    for w in range(4): a(f"v_sub_f32 v{vSC+2*w}, v{vSC+2*w}, v{vMX}")
    for w in range(4): a(f"v_mul_f32 v{vSC+2*w}, {sT3}, v{vSC+2*w}")
    for w in range(4): a(f"v_exp_f32 v{vSC+2*w}, v{vSC+2*w}")
    a(f"v_mul_f32 v{vL}, v{vSC}, v{vSC+1}")
    for w in range(1, 4): a(f"v_fmac_f32 v{vL}, v{vSC+2*w}, v{vSC+2*w+1}")
    a("s_waitcnt lgkmcnt(0)")
    for r in range(4): a(f"v_mul_f32 v{vACC+r}, v{vSC}, v{vP+r}")
    for w in range(1, 4):
        for r in range(4): a(f"v_fmac_f32 v{vACC+r}, v{vSC+2*w}, v{vP+4*w+r}")
    exset("0xffffffff")
    a(f"buffer_store_dwordx4 {V(vACC,4)}, v{vT+2}, {S(rWS)}, {sT0} offen sc1")
    exset(1)
    a(f"buffer_store_dwordx2 {V(vMX,2)}, v{vT+1}, {S(rWS)}, {sT1} offen sc1")
    exfull()
    stamp(4)
    a.label("L_pubdone")
    if 4 in (trigR, trigF): dbar()
    a("s_branch L_tail")

    a.label("L_helper")
    hX = 10; hC = 20; hT = 24; hACC = 32; hAOP = 36; hW = 64
    a(f"s_mul_i32 {sT0}, {sB}, 1280")
    a(f"v_lshlrev_b32 v8, 2, v{vLANE}")
    for i in range(5): a(f"buffer_load_dword v{hX+2*i}, v8, {S(rX)}, {sT0} offen offset:{256*i}")
    a(f"v_lshl_add_u32 v9, v{vC}, 2, v{vG}"); a("v_lshlrev_b32 v9, 1, v9")
    a(f"s_mul_i32 {sT1}, {sHW}, 320"); a(f"s_add_u32 {sT1}, {sT1}, {sT0}")
    for t in range(3): a(f"buffer_load_ushort v{hC+t}, v9, {S(rX)}, {sT1} offen offset:{128*t}")
    a(f"v_lshlrev_b32 v8, 13, v{vG}"); a(f"v_lshl_add_u32 v8, v{vC}, 4, v8")
    a(f"s_mul_i32 {sOFF}, {sHW}, {160*8192}")
    a(f"s_mov_b32 {sSTEP}, 32768")
    def wqld(n):
        a(f"buffer_load_dwordx4 {V(hW+4*n,4)}, v8, {S(rA)}, {sOFF} offen {wqpol}")
        a(f"s_add_u32 {sOFF}, {sOFF}, {sSTEP}")
    for n in range(NPRE): wqld(n)
    a("v_mov_b32 v9, 0")
    a(f"ds_write_b32 v9, v9 offset:{L_CNT}")
    a(f"s_waitcnt vmcnt({NPRE})")
    for i in range(5):
        a(f"v_and_b32 v{hX+2*i+1}, 0xffff0000, v{hX+2*i}"); a(f"v_lshlrev_b32 v{hX+2*i}, 16, v{hX+2*i}")
    def ln_finish(vmean, vvar, t0):
        bf16r(f"v{vmean}", f"v{vmean}")
        bf16r(f"v{vvar}", f"v{vvar}")
        a(f"v_add_f32 v{vvar}, {f32(1e-5)}, v{vvar}")
        bf16r(f"v{vvar}", f"v{vvar}")
        a(f"v_sqrt_f32 v{vvar}, v{vvar}")
        bf16r(f"v{vvar}", f"v{vvar}")
        a(f"v_rcp_f32 v{t0}, v{vvar}")
    def ln_apply(regs, vmean, vden, vrcp, tmps):
        for r in regs: a(f"v_sub_f32 v{r}, v{r}, v{vmean}")
        for r in regs: bf16r(f"v{r}", f"v{r}")
        for r, t in zip(regs, tmps): a(f"v_mul_f32 v{t}, v{r}, v{vrcp}")
        for r, t in zip(regs, tmps): a(f"v_fma_f32 v{r}, -v{t}, v{vden}, v{r}")
        for r, t in zip(regs, tmps): a(f"v_fma_f32 v{r}, v{r}, v{vrcp}, v{t}")
    a(f"v_add_f32 v{hT}, v{hX}, v{hX+1}")
    for i in range(2, 10): a(f"v_add_f32 v{hT}, v{hT}, v{hX+i}")
    wave_reduce("v_add_f32", [hT], [hT + 1])
    a(f"v_mul_f32 v{hT}, {f32(1/640)}, v{hT}")
    for i in range(10): a(f"v_sub_f32 v{hX+i}, v{hX+i}, v{hT}")
    a(f"v_mul_f32 v{hT+2}, v{hX}, v{hX}")
    for i in range(1, 10): a(f"v_fmac_f32 v{hT+2}, v{hX+i}, v{hX+i}")
    wave_reduce("v_add_f32", [hT + 2], [hT + 1])
    a(f"v_mul_f32 v{hT+2}, {f32(1/640)}, v{hT+2}")
    ln_finish(hT, hT + 2, hT + 3)
    for t in range(3): a(f"v_lshlrev_b32 v{hC+t}, 16, v{hC+t}")
    ln_apply([hC, hC + 1, hC + 2], hT, hT + 2, hT + 3, [hT + 4, hT + 5, hT + 6])
    for t in range(3): a(f"v_cvt_pk_bf16_f32 v{hC+t}, v{hC+t}, v{hC+t}")
    for r in range(4): a(f"v_mov_b32 v{hACC+r}, 0")
    for n in range(40):
        bo = hAOP + 4 * (n & 1)
        if n + NPRE < 40: wqld(n + NPRE)
        for r in range(4): a(f"v_and_b32_dpp v{bo+r}, v{hC+(n>>4)}, v{vMASK+r} row_newbcast:{n&15} {DPPF}")
        a(f"s_waitcnt vmcnt({min(NPRE, 39-n)})")
        a(f"v_mfma_f32_16x16x32_bf16 {V(hACC,4)}, {V(bo,4)}, {V(hW+4*n,4)}, {V(hACC,4)}")
    a(f"v_lshlrev_b32 v8, 5, v{vC}"); a(f"v_lshl_add_u32 v8, v{vG}, 4, v8")
    a(f"s_lshl_b32 {sT0}, {sHW}, 9"); a(f"v_add_u32 v8, {sT0}, v8")
    a("s_mov_b64 exec, 0xffffffff")
    a(f"ds_write_b128 v8, {V(hACC,4)} offset:{L_QP}")
    a("s_mov_b64 exec, -1")
    stamp(0)
    a("s_waitcnt lgkmcnt(0)")
    a("s_barrier")
    a(f"s_cmp_lt_u32 s2, {C0_ID}"); a("s_cbranch_scc1 L_h_noclear")
    for r in range(4): a(f"v_mov_b32 v{hACC+r}, -1")
    a(f"v_lshlrev_b32 v8, 4, v{vLANE}")
    a(f"s_sub_u32 {sT0}, s2, {C0_ID}"); a(f"s_lshl_b32 {sT0}, {sT0}, 2"); a(f"s_add_u32 {sT0}, {sT0}, {sHW}")
    a(f"s_lshl_b32 {sOFF}, {sT0}, 10"); a(f"s_mov_b32 {sCNT}, 14")
    a.label("L_h_clr")
    a(f"buffer_store_dwordx4 {V(hACC,4)}, v8, {S(rB2)}, {sOFF} offen sc1")
    a(f"s_add_u32 {sOFF}, {sOFF}, {sSTEP}")
    a(f"s_sub_u32 {sCNT}, {sCNT}, 1"); a(f"s_cmp_lg_u32 {sCNT}, 0"); a("s_cbranch_scc1 L_h_clr")
    a(f"s_lshl_b32 {sT0}, {sT0}, 2")
    a("v_mov_b32 v9, 1"); a("v_mov_b32 v10, 0")
    a("s_waitcnt vmcnt(0)")
    a("s_mov_b64 exec, 1")
    a(f"buffer_store_dword v9, v10, {S(rDBG)}, {sT0} offen sc1")
    a("s_mov_b64 exec, -1")
    a.label("L_h_noclear")
    if dry:
        a(f"s_cmp_lg_u32 {sHW}, 1"); a("s_cbranch_scc1 L_h_ret")
        for r in list(range(8, 64)) + ([254] if stamps else []): a(f"v_mov_b32 v{r}, 0")
        a(f"s_mov_b32 {sDRY}, 1"); a(f"s_mov_b64 {sFULL}, 0"); a("s_mov_b64 exec, 0")
        a("s_branch L_kend")
        a.label("L_h_back")
        a(f"s_mov_b32 {sDRY}, 0"); a(f"s_mov_b64 {sFULL}, -1"); a("s_mov_b64 exec, -1")
        a("s_waitcnt vmcnt(0) lgkmcnt(0)")
        a.label("L_h_ret")
    def swz_off(dst, t0):
        a(f"s_lshr_b32 {sT2}, {sHW}, 1"); a(f"s_lshl_b32 {sT2}, {sT2}, 3")
        a(f"v_lshlrev_b32 v{t0}, 1, v{vG}"); a(f"v_or_b32 v{t0}, {sT2}, v{t0}"); a(f"v_xor_b32 v{t0}, v{t0}, v{vC}")
        a(f"v_lshlrev_b32 v{t0}, 4, v{t0}"); a(f"v_mul_u32_u24 v{dst}, 1280, v{vG}"); a(f"v_add_u32 v{dst}, v{dst}, v{t0}")
    def dma_loop(lbl, srdr, voff, soff0_code, sstep, m0_code, mstep, n):
        soff0_code(); m0_code()
        a(f"s_mov_b32 {sCNT}, {n}")
        a.label(lbl)
        a(f"buffer_load_dwordx4 v{voff}, {S(srdr)}, {sOFF} offen {wpol} lds")
        a(f"s_add_u32 {sOFF}, {sOFF}, {sstep}"); a(f"s_add_u32 m0, m0, {mstep}")
        if dmad < 31: a(f"s_waitcnt vmcnt({dmad})")
        a(f"s_sub_u32 {sCNT}, {sCNT}, 1"); a(f"s_cmp_lg_u32 {sCNT}, 0"); a(f"s_cbranch_scc1 {lbl}")
    bars = [b for b in (2, 3, 4) if b in (trigR, trigF)]
    a(f"s_cmp_eq_u32 {sROLE}, 1"); a("s_cbranch_scc1 L_h_wo")
    a(f"s_cmp_eq_u32 {sROLE}, 2"); a("s_cbranch_scc1 L_h_ffn")
    for b in bars: a("s_barrier")
    a("s_branch L_tail")
    a.label("L_h_wo")
    a(f"s_mul_i32 {sT0}, {sRI}, 52429"); a(f"s_lshr_b32 {sT0}, {sT0}, 18")
    a(f"s_mul_i32 {sT1}, {sT0}, 5"); a(f"s_sub_u32 {sT1}, {sRI}, {sT1}")
    a(f"s_mul_i32 {sT0}, {sT0}, {512*1280}"); a(f"s_lshl_b32 {sT1}, {sT1}, 8"); a(f"s_add_u32 {sT0}, {sT0}, {sT1}")
    srd(rA, pWO, 4096 * 1280)
    swz_off(8, 9)
    for b in bars:
        if b <= trigR: a("s_barrier")
    dma_loop("L_h_wo_l", rA, 8,
             lambda: (a(f"s_mul_i32 {sOFF}, {sHW}, 5120"), a(f"s_add_u32 {sOFF}, {sOFF}, {sT0}")), 4 * 5120,
             lambda: (a(f"s_lshl_b32 {sT1}, {sHW}, 10"), a(f"s_add_u32 m0, {sT1}, {L_W}")), 4096, 32)
    for b in bars:
        if b > trigR: a("s_barrier")
    a("s_waitcnt vmcnt(0)")
    stamp(2)
    a("s_branch L_tail")
    a.label("L_h_ffn")
    a(f"v_lshrrev_b32 v8, 2, v{vLANE}"); a("v_mul_u32_u24 v8, 3456, v8")
    a(f"v_lshrrev_b32 v9, 4, v{vLANE}"); a("v_and_b32 v9, 2, v9"); a(f"v_and_b32 v10, 3, v{vLANE}"); a("v_xor_b32 v9, v9, v10")
    a("v_lshl_add_u32 v8, v9, 4, v8")
    a(f"s_lshl_b32 {sT0}, {sRI}, 6")
    srd(rA, pWG, 640 * 3456); srd(rB2, pWU, 640 * 3456); srd(rKV, pWD, 1728 * 1280)
    swz_off(11, 9)
    a(f"s_mul_i32 {sT3}, {sRI}, {32*1280}")
    for b in bars:
        if b <= trigF: a("s_barrier")
    for nm, rr, lo in (("g", rA, L_W), ("u", rB2, L_W + 40960)):
        dma_loop(f"L_h_f{nm}_l", rr, 8,
                 lambda: (a(f"s_mul_i32 {sOFF}, {sHW}, {16*3456}"), a(f"s_add_u32 {sOFF}, {sOFF}, {sT0}")), 64 * 3456,
                 lambda: (a(f"s_lshl_b32 {sT1}, {sHW}, 10"), a(f"s_add_u32 m0, {sT1}, {lo}")), 4096, 10)
    for half in range(2):
        dma_loop(f"L_h_fd{half}_l", rKV, 11,
                 lambda: (a(f"s_mul_i32 {sOFF}, {sHW}, 5120"), a(f"s_add_u32 {sOFF}, {sOFF}, {sT3}"), a(f"s_add_u32 {sOFF}, {sOFF}, {half*4*5120}")), 256,
                 lambda: (a(f"s_lshl_b32 {sT1}, {sHW}, 10"), a(f"s_add_u32 m0, {sT1}, {L_W+81920+half*4096}")), 8192, 5)
    for b in bars:
        if b > trigF: a("s_barrier")
    a("s_waitcnt vmcnt(0)")
    stamp(2)

    a.label("L_tail")
    a(f"s_cmp_eq_u32 {sROLE}, 0"); a("s_cbranch_scc1 L_end")
    dbar()
    a(f"s_cmp_eq_u32 {sROLE}, 2"); a("s_cbranch_scc1 L_F")
    a(f"s_cmp_eq_u32 {sROLE}, 3"); a("s_cbranch_scc1 L_O")
    def poll(lbl, loads, regs, tmp):
        a(f"s_mov_b32 {sSP}, {SPIN}")
        a.label(lbl)
        for l in loads: a(l)
        a(f"s_sub_u32 {sSP}, {sSP}, 1")
        a("s_waitcnt vmcnt(0)")
        rs = list(regs)
        a(f"v_max_u32 v{tmp}, v{rs[0]}, v{rs[1]}")
        rs = rs[2:]
        while len(rs) >= 2:
            a(f"v_max3_u32 v{tmp}, v{tmp}, v{rs[0]}, v{rs[1]}"); rs = rs[2:]
        if rs: a(f"v_max_u32 v{tmp}, v{tmp}, v{rs[0]}")
        a(f"v_cmp_eq_u32 vcc, -1, v{tmp}")
        a(f"s_cmp_eq_u32 {sSP}, 0"); a(f"s_cbranch_scc1 {lbl}_x")
        a(f"s_cbranch_vccnz {lbl}")
        a.label(lbl + "_x")
    def tr_addr(dst, t0, t1, cg_base_sgpr):
        a(f"v_lshrrev_b32 v{t0}, 2, v{vLANE}"); a(f"v_and_b32 v{t0}, 7, v{t0}")
        a(f"v_lshlrev_b32 v{t0}, 1, v{t0}")
        a(f"v_bfe_u32 v{t1}, v{vLANE}, 1, 1"); a(f"v_add_u32 v{t1}, {cg_base_sgpr}, v{t1}"); a(f"v_xor_b32 v{t0}, v{t0}, v{t1}")
        a(f"v_lshlrev_b32 v{t0}, 4, v{t0}")
        a(f"v_and_b32 v{t1}, 1, v{vLANE}"); a(f"v_lshl_add_u32 v{t0}, v{t1}, 3, v{t0}")
        a(f"v_bfe_u32 v{t1}, v{vLANE}, 2, 2"); a(f"v_lshl_add_u32 v{t1}, v{vG}, 3, v{t1}")
        a(f"v_lshl_add_u32 v{dst}, v{t1}, 8, v{t0}")
    tF = 64; tO = 128; tA = 8; tD = 16
    a(f"s_lshl_b32 {sT0}, {sWAVE}, 1")
    tr_addr(tA, tA + 1, tA + 2, sT0)
    a(f"v_add_u32 v{tA}, {L_W}, v{tA}"); a(f"v_add_u32 v{tA+1}, 65536, v{tA}")
    for ks in range(16):
        for hh in range(2):
            a(f"ds_read_b64_tr_b16 {V(tF+4*ks+2*hh,2)}, v{tA+(ks>>3)} offset:{(ks&7)*8192+hh*1024}")
    a(f"s_mul_i32 {sT0}, {sRI}, 52429"); a(f"s_lshr_b32 {sT0}, {sT0}, 18")
    a(f"s_mul_i32 {sT1}, {sT0}, 5"); a(f"s_sub_u32 {sT1}, {sRI}, {sT1}")
    a(f"s_lshr_b32 {sT2}, {sWAVE}, 2"); a(f"s_lshl_b32 {sT2}, {sT2}, 5"); a(f"s_and_b32 {sT3}, {sWAVE}, 3"); a(f"s_add_u32 {sT2}, {sT2}, {sT3}")
    a(f"s_lshl_b32 {sT3}, {sT0}, 2"); a(f"s_add_u32 {sT2}, {sT2}, {sT3}")
    a(f"s_lshl_b32 {sOFF}, {sT2}, 11")
    a(f"s_lshl_b32 {sCNT}, {sT2}, 5"); a(f"s_add_u32 {sCNT}, {sCNT}, {OFF_ST}")
    a(f"s_mul_i32 {sT0}, {sT0}, 5120"); a(f"s_lshl_b32 {sT1}, {sT1}, 9"); a(f"s_add_u32 {sT0}, {sT0}, {sT1}"); a(f"s_add_u32 {sT0}, {sT0}, {OFF_YP}")
    a(f"s_lshl_b32 {sT1}, {sWAVE}, 6"); a(f"s_add_u32 {sT0}, {sT0}, {sT1}")
    a(f"v_lshlrev_b32 v{tA+2}, 3, v{vLANE}"); a(f"v_mov_b32 v{tA+3}, 0")
    a(f"s_lshr_b32 {sT2}, {sWAVE}, 2"); a(f"s_mul_i32 {sT2}, {sT2}, 1088"); a(f"s_and_b32 {sT3}, {sWAVE}, 3"); a(f"s_lshl_b32 {sT3}, {sT3}, 8"); a(f"s_add_u32 {sT2}, {sT2}, {sT3}")
    a(f"v_lshl_add_u32 v{tA+4}, v{vLANE}, 2, {sT2}")
    a(f"v_and_b32 v{tA+5}, 1, v{vLANE}"); a(f"v_mul_u32_u24 v{tA+5}, 1088, v{tA+5}"); a(f"v_lshl_add_u32 v{tA+5}, v{vG}, 4, v{tA+5}")
    a(f"v_mul_u32_u24 v{tA+6}, 2560, v{vC}"); a(f"v_lshl_add_u32 v{tA+6}, v{vG}, 4, v{tA+6}")
    a(f"v_cmp_gt_u32 {sM0}, 2, v{vC}")
    a(f"s_mov_b32 {sT3}, {f32(LOG2E)}")
    stamp(5)
    loads = [f"buffer_load_dwordx2 {V(tD+2*s,2)}, v{tA+2}, {S(rWS)}, {sOFF} offen offset:{512*s} sc1" for s in range(4)]
    loads += [f"buffer_load_dwordx4 {V(tD+8+4*i,4)}, v{tA+3}, {S(rWS)}, {sCNT} offen offset:{16*i} sc1" for i in range(2)]
    poll("L_R_poll", loads, range(tD, tD + 16), tD + 16)
    stamp(6)
    st = tD + 8; tM = tD + 16
    a(f"v_max_f32 v{tM}, v{st}, v{st+2}"); a(f"v_max3_f32 v{tM}, v{tM}, v{st+4}, v{st+6}")
    for s in range(4): a(f"v_sub_f32 v{st+2*s}, v{st+2*s}, v{tM}")
    for s in range(4): a(f"v_mul_f32 v{st+2*s}, {sT3}, v{st+2*s}")
    for s in range(4): a(f"v_exp_f32 v{st+2*s}, v{st+2*s}")
    a(f"v_mul_f32 v{tM}, v{st}, v{st+1}")
    a(f"v_mul_f32 v{tM+1}, v{st}, v{tD}"); a(f"v_mul_f32 v{tM+2}, v{st}, v{tD+1}")
    for s in range(1, 4):
        a(f"v_fmac_f32 v{tM}, v{st+2*s}, v{st+2*s+1}")
        a(f"v_fmac_f32 v{tM+1}, v{st+2*s}, v{tD+2*s}"); a(f"v_fmac_f32 v{tM+2}, v{st+2*s}, v{tD+2*s+1}")
    a(f"v_rcp_f32 v{tM}, v{tM}")
    a(f"v_mul_f32 v{tM+1}, v{tM+1}, v{tM}"); a(f"v_mul_f32 v{tM+2}, v{tM+2}, v{tM}")
    a(f"v_cvt_pk_bf16_f32 v{tM+1}, v{tM+1}, v{tM+2}")
    a(f"ds_write_b32 v{tA+4}, v{tM+1} offset:{L_OB}")
    a("s_waitcnt lgkmcnt(0)")
    dbar()
    for ks in range(16): a(f"ds_read_b128 {V(tO+4*ks,4)}, v{tA+5} offset:{L_OB+64*ks}")
    for ks in range(16):
        a(f"s_waitcnt lgkmcnt({15-ks})")
        a(f"v_mfma_f32_16x16x32_bf16 {V(tD,4)}, {V(tF+4*ks,4)}, {V(tO+4*ks,4)}, {V(tD,4) if ks else 0}")
    exset(sM0)
    a(f"buffer_store_dwordx4 {V(tD,4)}, v{tA+6}, {S(rWS)}, {sT0} offen sc1")
    exfull()
    stamp(7)
    a("s_branch L_end")
    a.label("L_F")
    fG = 64; fU = 84; fD = 104; fB = 124; fY = 16; fX = 48; fH = 52; fT = 56; fA = 8
    a(f"s_lshr_b32 {sT0}, {sWAVE}, 2"); a(f"s_and_b32 {sT1}, {sWAVE}, 3")
    a(f"s_mul_i32 {sT2}, {sT1}, 160")
    a(f"v_lshl_add_u32 v{fA}, v{vLANE}, 2, {sT2}")
    a(f"v_cmp_gt_u32 {sM0}, 40, v{vLANE}")
    a(f"v_cndmask_b32 v{fA}, 0, v{fA}, {sM0}")
    a(f"v_lshlrev_b32 v{fA+1}, 1, v{fA}")
    a(f"s_mul_i32 {sT2}, {sT0}, 1280")
    a(f"buffer_load_dwordx2 {V(fX,2)}, v{fA+1}, {S(rX)}, {sT2} offen")
    a(f"v_lshlrev_b32 v{fA+2}, 2, v{fA}")
    a(f"s_mul_i32 {sOFF}, {sT0}, 2560"); a(f"s_add_u32 {sOFF}, {sOFF}, {OFF_YP}")
    a(f"s_mul_i32 {sT2}, {sT0}, 1344"); a(f"v_add_u32 v{fA+1}, {sT2}, v{fA+1}")
    a(f"s_and_b32 {sT2}, {sWAVE}, 1"); a(f"s_lshl_b32 {sT2}, {sT2}, 1")
    a(f"v_bfe_u32 v{fT}, v{vLANE}, 1, 1"); a(f"v_add_u32 v{fT}, {sT2}, v{fT}")
    a(f"v_and_b32 v{fT+1}, 1, v{vG}"); a(f"v_lshlrev_b32 v{fT+1}, 1, v{fT+1}"); a(f"v_xor_b32 v{fT}, v{fT}, v{fT+1}")
    a(f"v_lshlrev_b32 v{fT}, 4, v{fT}"); a(f"v_and_b32 v{fT+1}, 1, v{vLANE}"); a(f"v_lshl_add_u32 v{fT}, v{fT+1}, 3, v{fT}")
    a(f"v_bfe_u32 v{fT+1}, v{vLANE}, 2, 2"); a(f"v_lshl_add_u32 v{fT+1}, v{vG}, 3, v{fT+1}"); a(f"v_lshl_add_u32 v{fT}, v{fT+1}, 6, v{fT}")
    a(f"s_lshr_b32 {sT2}, {sWAVE}, 1"); a(f"s_mul_i32 {sT3}, {sT2}, {160*64}"); a(f"s_add_u32 {sT3}, {sT3}, {L_W}")
    a(f"v_add_u32 v{fT}, {sT3}, v{fT}")
    for ks in range(5):
        for hh in range(2):
            a(f"ds_read_b64_tr_b16 {V(fG+4*ks+2*hh,2)}, v{fT} offset:{ks*2048+hh*256}")
    for ks in range(5):
        for hh in range(2):
            a(f"ds_read_b64_tr_b16 {V(fU+4*ks+2*hh,2)}, v{fT} offset:{40960+ks*2048+hh*256}")
    a(f"v_and_b32 v{fA+3}, 1, v{vLANE}"); a(f"v_mul_u32_u24 v{fA+3}, 1344, v{fA+3}"); a(f"v_lshl_add_u32 v{fA+3}, v{vG}, 4, v{fA+3}")
    a(f"s_mul_i32 {sT3}, {sT2}, 320"); a(f"v_add_u32 v{fA+3}, {sT3}, v{fA+3}")
    a(f"s_lshl_b32 {sT2}, {sT2}, 9"); a(f"s_and_b32 {sT3}, {sWAVE}, 1"); a(f"s_lshl_b32 {sT3}, {sT3}, 6"); a(f"s_add_u32 {sT2}, {sT2}, {sT3}")
    a(f"v_lshlrev_b32 v{fA+4}, 7, v{vC}"); a(f"v_lshl_add_u32 v{fA+4}, v{vG}, 4, v{fA+4}"); a(f"v_add_u32 v{fA+4}, {sT2}, v{fA+4}")
    tr_addr(fT + 3, fT + 1, fT + 2, 0)
    for i in range(5):
        a(f"s_mul_i32 {sT2}, {sWAVE}, 5"); a(f"s_add_u32 {sT2}, {sT2}, {i}")
        a(f"s_and_b32 {sT3}, {sT2}, 7"); a(f"s_lshl_b32 {sT3}, {sT3}, 5")
        a(f"v_xor_b32 v{fT+4}, {sT3}, v{fT+3}")
        a(f"s_lshr_b32 {sT2}, {sT2}, 3"); a(f"s_lshl_b32 {sT2}, {sT2}, 13"); a(f"s_add_u32 {sT2}, {sT2}, {L_W+81920}")
        a(f"v_add_u32 v{fT+4}, {sT2}, v{fT+4}")
        for hh in range(2): a(f"ds_read_b64_tr_b16 {V(fD+4*i+2*hh,2)}, v{fT+4} offset:{hh*1024}")
    a(f"v_lshlrev_b32 v{fA+5}, 2, v{vLANE}")
    a(f"s_mul_i32 {sT2}, {sWAVE}, 192"); a(f"s_add_u32 {sT2}, {sT2}, {L_AC}")
    a(f"v_lshl_add_u32 v{fA+6}, v{vLANE}, 1, {sT2}")
    a(f"v_and_b32 v{fA+7}, 1, v{vLANE}"); a(f"v_lshlrev_b32 v{fA+7}, 6, v{fA+7}"); a(f"v_lshl_add_u32 v{fA+7}, v{vG}, 4, v{fA+7}"); a(f"v_add_u32 v{fA+7}, {sT2}, v{fA+7}")
    a(f"v_mul_u32_u24 v{fT+7}, 2560, v{vC}"); a(f"v_lshl_add_u32 v{fT+7}, v{vG}, 4, v{fT+7}")
    a(f"s_mul_i32 {sCNT}, {sRI}, 5120"); a(f"s_mul_i32 {sT2}, {sWAVE}, 320"); a(f"s_add_u32 {sCNT}, {sCNT}, {sT2}"); a(f"s_add_u32 {sCNT}, {sCNT}, {OFF_ZP}")
    a(f"v_cmp_gt_u32 {sM1}, 2, v{vC}")
    a(f"s_lshl_b32 {sT3}, {sWAVE}, 3"); a(f"v_mov_b32 v{fT+5}, {sT3}")
    a(f"s_lshl_b32 {sT3}, {sT0}, 5"); a(f"v_mov_b32 v{fT+6}, {sT3}")
    a("s_waitcnt vmcnt(0)")
    a(f"v_and_b32 v{fX+3}, 0xffff0000, v{fX+1}"); a(f"v_lshlrev_b32 v{fX+2}, 16, v{fX+1}")
    a(f"v_and_b32 v{fX+1}, 0xffff0000, v{fX}"); a(f"v_lshlrev_b32 v{fX}, 16, v{fX}")
    for kb in range(1, 8): a(f"s_add_u32 s{89+kb}, {sOFF}, {kb*5120}")
    stamp(5)
    loads = [f"buffer_load_dwordx4 {V(fY+4*kb,4)}, v{fA+2}, {S(rWS)}, {sOFF if kb == 0 else 's%d' % (89+kb)} offen sc1" for kb in range(8)]
    poll("L_F_poll", loads, range(fY, fY + 32), fT)
    stamp(6)
    for st_ in (4, 8, 16):
        for b_ in range(0, 32, 2 * st_):
            for r in range(4): a(f"v_add_f32 v{fY+b_+r}, v{fY+b_+r}, v{fY+b_+r+st_}")
    for r in range(4): bf16r(f"v{fY+r}", f"v{fY+r}")
    for r in range(4): a(f"v_add_f32 v{fH+r}, v{fX+r}, v{fY+r}")
    for r in range(4): bf16r(f"v{fH+r}", f"v{fH+r}")
    a(f"v_readlane_b32 {sT2}, v{fH}, 40")
    for r in range(4): a(f"v_subrev_f32 v{fY+r}, {sT2}, v{fH+r}")
    for r in range(4): a(f"v_cndmask_b32 v{fY+r}, 0, v{fY+r}, {sM0}")
    a(f"v_add_f32 v{fT}, v{fY}, v{fY+1}"); a(f"v_mul_f32 v{fT+1}, v{fY}, v{fY}")
    a(f"v_add_f32 v{fT}, v{fT}, v{fY+2}"); a(f"v_fmac_f32 v{fT+1}, v{fY+1}, v{fY+1}")
    a(f"v_add_f32 v{fT}, v{fT}, v{fY+3}"); a(f"v_fmac_f32 v{fT+1}, v{fY+2}, v{fY+2}")
    a(f"v_fmac_f32 v{fT+1}, v{fY+3}, v{fY+3}")
    wave_reduce("v_add_f32", [fT, fT + 1], [fT + 2, fT + 3])
    a(f"ds_write_b64 v{fT+5}, {V(fT,2)} offset:{L_SF}")
    a("s_waitcnt lgkmcnt(0)")
    dbar()
    a(f"ds_read_b128 {V(fY,4)}, v{fT+6} offset:{L_SF}"); a(f"ds_read_b128 {V(fY+4,4)}, v{fT+6} offset:{L_SF+16}")
    a("s_waitcnt lgkmcnt(0)")
    a(f"v_add_f32 v{fY}, v{fY}, v{fY+2}"); a(f"v_add_f32 v{fY+1}, v{fY+1}, v{fY+3}")
    a(f"v_add_f32 v{fY+4}, v{fY+4}, v{fY+6}"); a(f"v_add_f32 v{fY+5}, v{fY+5}, v{fY+7}")
    a(f"v_add_f32 v{fY}, v{fY}, v{fY+4}"); a(f"v_add_f32 v{fY+1}, v{fY+1}, v{fY+5}")
    a(f"v_mul_f32 v{fY}, {f32(1/640)}, v{fY}"); a(f"v_mul_f32 v{fY+1}, {f32(1/640)}, v{fY+1}")
    a(f"v_fma_f32 v{fY+1}, -v{fY}, v{fY}, v{fY+1}"); a(f"v_max_f32 v{fY+1}, 0, v{fY+1}")
    a(f"v_add_f32 v{fY}, {sT2}, v{fY}")
    ln_finish(fY, fY + 1, fY + 2)
    ln_apply([fH + r for r in range(4)], fY, fY + 1, fY + 2, [fY + 4 + r for r in range(4)])
    a(f"v_cvt_pk_bf16_f32 v{fH}, v{fH}, v{fH+1}"); a(f"v_cvt_pk_bf16_f32 v{fH+1}, v{fH+2}, v{fH+3}")
    exset(sM0)
    a(f"ds_write_b64 v{fA+1}, {V(fH,2)} offset:{L_HN}")
    exfull()
    a("s_waitcnt lgkmcnt(0)")
    dbar()
    for ks in range(5): a(f"ds_read_b128 {V(fB+4*ks,4)}, v{fA+3} offset:{L_HN+64*ks}")
    for ks in range(5):
        a(f"s_waitcnt lgkmcnt({4-ks})")
        a(f"v_mfma_f32_16x16x32_bf16 {V(fY,4)}, {V(fG+4*ks,4)}, {V(fB+4*ks,4)}, {V(fY,4) if ks else 0}")
        a(f"v_mfma_f32_16x16x32_bf16 {V(fY+4,4)}, {V(fU+4*ks,4)}, {V(fB+4*ks,4)}, {V(fY+4,4) if ks else 0}")
    exset(sM1)
    a(f"ds_write_b128 v{fA+4}, {V(fY,4)} offset:{L_PG}")
    a(f"ds_write_b128 v{fA+4}, {V(fY+4,4)} offset:{L_PG+256}")
    exfull()
    a("s_waitcnt lgkmcnt(0)")
    dbar()
    for kq in range(4):
        a(f"ds_read2st64_b32 {V(fY+8+2*kq,2)}, v{fA+5} offset0:{(L_PG+512*kq)//256} offset1:{(L_PG+512*kq+256)//256}")
    a("s_waitcnt lgkmcnt(0)")
    g_, u_ = fY + 8, fY + 9
    a(f"v_add_f32 v{g_}, v{g_}, v{g_+2}"); a(f"v_add_f32 v{u_}, v{u_}, v{u_+2}")
    a(f"v_add_f32 v{g_+4}, v{g_+4}, v{g_+6}"); a(f"v_add_f32 v{u_+4}, v{u_+4}, v{u_+6}")
    a(f"v_add_f32 v{g_}, v{g_}, v{g_+4}"); a(f"v_add_f32 v{u_}, v{u_}, v{u_+4}")
    bf16r(f"v{g_}", f"v{g_}"); bf16r(f"v{u_}", f"v{u_}")
    t_ = fY + 10
    a(f"v_mul_f32 v{t_}, v{g_}, v{g_}")
    a(f"v_mul_f32 v{t_}, {f32(0.044715)}, v{t_}")
    a(f"v_fma_f32 v{t_}, v{t_}, v{g_}, v{g_}")
    a(f"v_mul_f32 v{t_}, {f32(-2.0 * 0.7978845608028654 * LOG2E)}, v{t_}")
    a(f"v_exp_f32 v{t_}, v{t_}")
    a(f"v_add_f32 v{t_}, 1.0, v{t_}")
    a(f"v_rcp_f32 v{t_}, v{t_}")
    a(f"v_mul_f32 v{t_}, v{g_}, v{t_}")
    bf16r(f"v{t_}", f"v{t_}")
    a(f"v_mul_f32 v{t_}, v{t_}, v{u_}")
    a(f"v_cvt_pk_bf16_f32 v{t_}, v{t_}, v{t_}")
    a(f"ds_write_b16 v{fA+6}, v{t_}")
    a("s_waitcnt lgkmcnt(0)")
    a(f"ds_read_b128 {V(fB,4)}, v{fA+7}")
    a("s_waitcnt lgkmcnt(0)")
    for i in range(5):
        a(f"v_mfma_f32_16x16x32_bf16 {V(fY+4*i,4)}, {V(fD+4*i,4)}, {V(fB,4)}, 0")
    exset(sM1)
    for i in range(5):
        a(f"buffer_store_dwordx4 {V(fY+4*i,4)}, v{fT+7}, {S(rWS)}, {sCNT} offen offset:{64*i} sc1")
    exfull()
    stamp(7)
    a("s_branch L_end")
    a.label("L_O")
    oA = 8; oY = 16; oZ = 20; oX = 24; oT = 28
    a(f"s_lshl_b32 {sT0}, {sRI}, 5"); a(f"s_lshl_b32 {sT1}, {sWAVE}, 2"); a(f"s_add_u32 {sT0}, {sT0}, {sT1}")
    a(f"s_lshl_b32 {sT1}, {sT0}, 1")
    a(f"v_mov_b32 v{oA}, 0")
    a(f"buffer_load_dwordx2 {V(oX,2)}, v{oA}, {S(rX)}, {sT1} offen")
    a(f"s_lshl_b32 {sT0}, {sT0}, 2")
    a(f"s_add_u32 {sOFF}, {sT0}, {OFF_YP}"); a(f"s_add_u32 {sCNT}, {sT0}, {OFF_ZP}")
    a(f"v_and_b32 v{oA+1}, 7, v{vLANE}"); a(f"v_mul_u32_u24 v{oA+1}, 5120, v{oA+1}")
    a(f"v_min_u32 v{oA+2}, 53, v{vLANE}"); a(f"v_mul_u32_u24 v{oA+2}, 5120, v{oA+2}")
    a(f"v_cmp_gt_u32 {sM0}, 54, v{vLANE}")
    srd(rA, pOUT, 2560)
    poll("L_O_poll1", [f"buffer_load_dwordx4 {V(oY,4)}, v{oA+1}, {S(rWS)}, {sOFF} offen sc1"], range(oY, oY + 4), oT)
    for mod in ("quad_perm:[1,0,3,2]", "quad_perm:[2,3,0,1]", "row_half_mirror"):
        for r in range(4): a(f"v_add_f32_dpp v{oY+r}, v{oY+r}, v{oY+r} {mod} {DPPF}")
    a(f"v_and_b32 v{oX+3}, 0xffff0000, v{oX+1}"); a(f"v_lshlrev_b32 v{oX+2}, 16, v{oX+1}")
    a(f"v_and_b32 v{oX+1}, 0xffff0000, v{oX}"); a(f"v_lshlrev_b32 v{oX}, 16, v{oX}")
    for r in range(4): bf16r(f"v{oY+r}", f"v{oY+r}")
    for r in range(4): a(f"v_add_f32 v{oY+r}, v{oX+r}, v{oY+r}")
    for r in range(4): bf16r(f"v{oY+r}", f"v{oY+r}")
    stamp(5)
    poll("L_O_poll2", [f"buffer_load_dwordx4 {V(oZ,4)}, v{oA+2}, {S(rWS)}, {sCNT} offen sc1"], range(oZ, oZ + 4), oT)
    stamp(6)
    for r in range(4): a(f"v_cndmask_b32 v{oZ+r}, 0, v{oZ+r}, {sM0}")
    wave_reduce("v_add_f32", [oZ + r for r in range(4)], [oT + r for r in range(4)])
    for r in range(4): bf16r(f"v{oZ+r}", f"v{oZ+r}")
    for r in range(4): a(f"v_add_f32 v{oZ+r}, v{oY+r}, v{oZ+r}")
    a(f"v_cvt_pk_bf16_f32 v{oZ}, v{oZ}, v{oZ+1}"); a(f"v_cvt_pk_bf16_f32 v{oZ+1}, v{oZ+2}, v{oZ+3}")
    exset(1)
    a(f"buffer_store_dwordx2 {V(oZ,2)}, v{oA}, {S(rA)}, {sT1} offen")
    exfull()
    stamp(7)
    a.label("L_end")
    if dry:
        a(f"s_cmp_lg_u32 {sDRY}, 0"); a("s_cbranch_scc1 L_h_back")
    a.label("L_exit")
    a("s_endpgm")

    hdr = open("sequential_preLN__gqa_block_cached__geglu_ffn__decode.s.ref").read().split("; Override launch")[0]
    return hdr + f"""; @launch grid=(256,1,1) block=(512,1,1) lds={LDS_BYTES}
.amdgcn_target "amdgcn-amd-amdhsa--gfx950"
.text
.globl {NAME}
.p2align 8
.type {NAME},@function
{NAME}:
""" + a.finalize() + f""".section .rodata,"a"
.p2align 6
.amdhsa_kernel {NAME}
  .amdhsa_next_free_vgpr 256
  .amdhsa_next_free_sgpr 102
  .amdhsa_accum_offset 256
  .amdhsa_group_segment_fixed_size 0
  .amdhsa_kernarg_size 96
  .amdhsa_user_sgpr_count 2
  .amdhsa_user_sgpr_kernarg_segment_ptr 1
  .amdhsa_system_sgpr_workgroup_id_x 1
  .amdhsa_float_denorm_mode_32 3
.end_amdhsa_kernel
"""

if __name__ == "__main__":
    kw = eval("dict(%s)" % (sys.argv[2] if len(sys.argv) > 2 else ""))
    open(sys.argv[1], "w").write(gen(**kw))
```

```python
import sys, struct
sys.path.insert(0, "gen")
from asmlib import Asm

NAME = "sequential_preLN__gqa_block_cached__geglu_ffn__decode_kernel"
def f32(x): return "0x%08x" % struct.unpack("<I", struct.pack("<f", x))[0]

SPR = 3
OFF_OP = 0x0
OFF_ST = 0x18000
OFF_YP = 0x18800
OFF_ZP = 0x22800
CLR_END = 0x66000
OFF_QP = 0x70000
OFF_EP = 0xF8000
OFF_TS = 0x100000
WS_SIZE = 0x200000
L_Q = 0
L_ST = 256
L_CNT = 320
L_OP = 16384
L_OB = 4352
L_HN = 6912
L_ONE = 9600
L_SP = 11008
L_AC = 13568
L_RM = 13824
L_W = 16384
LDS_BYTES = L_W + 131072
NS = 64 * SPR
R_FIRST = 24
LOG2E = 1.4426950408889634
SPIN = 60000
NG = 6
NSTEP = 86

def gen(NGR=3, DK=4, DV=4, DP=4, DE=4, NEND=0, QAT=28, QSTART=40, QW=0, BUD=24, SIDEAT=30, DPAT=None, stamps=False, wqpol="nt", wpol="nt", kvpol="nt", dmad=7, dry=True, norole=False, gsleep=2, nodma=False, fst=False, psleep=1, osleep=0, rsleep=1):
    a = Asm()
    R = 16 * NGR
    sWAVE, sROW, sS, sREC, sSI = "s3", "s6", "s8", "s9", "s7"
    pX, pK, pV, pWQ, pWO, pWG, pWU, pWD, pOUT, pDBG, pWS = 16, 18, 20, 22, 24, 28, 30, 32, 34, 36, 38
    rWS, rKV, rA, rB2, rX, rDBG, rOUT = 40, 44, 48, 52, 56, 60, 92
    sLW, sC1280 = "s14", "s99"
    sOFF, sCNT, sT0, sT1, sT2, sT3 = "s64", "s65", "s66", "s67", "s68", "s69"
    sVB = 70
    sM0, sM1, sM2 = "s[72:73]", "s[74:75]", "s[76:77]"
    sFULL = "s[78:79]"
    sFI, sRI, sSP, sDRY, sOFF0, sSTEP, sTAG, sND = "s80", "s81", "s82", "s83", "s10", "s11", "s12", "s13"
    def srd(r, p, size, off=None):
        if off is None:
            a(f"s_mov_b32 s{r}, s{p}"); a(f"s_mov_b32 s{r+1}, s{p+1}")
        else:
            a(f"s_add_u32 s{r}, s{p}, {off}"); a(f"s_addc_u32 s{r+1}, s{p+1}, 0")
        a(f"s_mov_b32 s{r+2}, {size}"); a(f"s_mov_b32 s{r+3}, 0x20000")
    def S(r): return f"s[{r}:{r+3}]"
    def V(r, n=1): return f"v{r}" if n == 1 else f"v[{r}:{r+n-1}]"
    def exset(m): a(f"s_and_b64 exec, {sFULL}, {m}")
    def exfull(): a(f"s_mov_b64 exec, {sFULL}")
    nb = [0]
    def uid():
        nb[0] += 1; return nb[0]
    def dbar():
        n = uid()
        a(f"s_cbranch_execz L_nb{n}"); a("s_barrier"); a.label(f"L_nb{n}")
    def stamp(idx):
        if not stamps: return
        a("s_memrealtime s[84:85]")
        a("s_lshl_b32 s86, s2, 3"); a(f"s_add_u32 s86, s86, {sWAVE}"); a("s_lshl_b32 s86, s86, 7"); a(f"s_add_u32 s86, s86, {OFF_TS + idx*8}")
        a("s_waitcnt lgkmcnt(0)")
        a("s_mov_b64 s[88:89], exec")
        exset(1)
        a("v_mov_b32 v60, s84"); a("v_mov_b32 v61, s85"); a("v_mov_b32 v62, 0")
        a(f"buffer_store_dwordx2 v[60:61], v62, {S(rWS)}, s86 offen")
        a("s_mov_b64 exec, s[88:89]")
    def cyc(i):
        if fst: a(f"s_memtime s[{16+2*i}:{17+2*i}]")
    def bf16r(dst, src):
        a(f"v_cvt_pk_bf16_f32 {dst}, {src}, {src}"); a(f"v_and_b32 {dst}, 0xffff0000, {dst}")
    DPPF = "row_mask:0xf bank_mask:0xf"
    ROWRED = ("quad_perm:[1,0,3,2]", "quad_perm:[2,3,0,1]", "row_half_mirror", "row_mirror")
    def wave_reduce(op, regs, tmp, half=False):
        for mod in ROWRED:
            for r in regs: a(f"{op}_dpp v{r}, v{r}, v{r} {mod} {DPPF}")
        for sw in ("v_permlane16_swap_b32",) + (() if half else ("v_permlane32_swap_b32",)):
            for r, t in zip(regs, tmp): a(f"v_mov_b32 v{t}, v{r}")
            for r, t in zip(regs, tmp): a(f"{sw} v{r}, v{t}")
            for r, t in zip(regs, tmp): a(f"{op} v{r}, v{r}, v{t}")
    def poll(lbl, loads, body, sleep=0):
        a(f"s_mov_b32 {sSP}, {SPIN}")
        if sleep:
            a(f"s_branch {lbl}_e")
        a.label(lbl)
        if sleep:
            a(f"s_sleep {sleep}"); a.label(f"{lbl}_e")
        for l in loads: a(l)
        a(f"s_sub_u32 {sSP}, {sSP}, 1"); a(f"s_cmp_eq_u32 {sSP}, 0"); a(f"s_cselect_b64 {sM2}, 0, -1")
        body()
        a(f"s_and_b64 vcc, vcc, {sM2}")
        a(f"s_cbranch_vccnz {lbl}")
    def ln_finish_l(vmean, vvar, t0):
        L = []
        def b(d): L.append(f"v_cvt_pk_bf16_f32 v{d}, v{d}, v{d}"); L.append(f"v_and_b32 v{d}, 0xffff0000, v{d}")
        b(vvar); L.append(f"v_add_f32 v{vvar}, {f32(1e-5)}, v{vvar}"); b(vvar)
        L.append(f"v_sqrt_f32 v{vvar}, v{vvar}"); b(vmean); b(vvar)
        L.append(f"v_rcp_f32 v{t0}, v{vvar}")
        return L
    def mktag(vreg):
        a(f"v_readfirstlane_b32 {sTAG}, v{vreg}")
        a(f"s_mul_i32 {sTAG}, {sTAG}, 0x9E3779B1"); a(f"s_add_u32 {sTAG}, {sTAG}, 0x7F4A7C15")

    vLANE, vG, vC = 1, 2, 3
    vMASK = 4
    a("s_cmp_ge_u32 s2, 256"); a("s_cbranch_scc1 L_exit")
    a("s_load_dwordx16 s[16:31], s[0:1], 0")
    a("s_load_dwordx8 s[32:39], s[0:1], 64")
    a("v_lshrrev_b32 v2, 6, v0")
    a(f"v_and_b32 v{vLANE}, 63, v0")
    a(f"v_readfirstlane_b32 {sWAVE}, v2")
    a("s_sub_u32 s15, s2, 64")
    a("s_and_b32 s4, s15, 7"); a("s_lshr_b32 s5, s15, 3"); a("s_and_b32 s5, s5, 31")
    a(f"s_mul_i32 {sT0}, s5, 43"); a(f"s_lshr_b32 {sT0}, {sT0}, 7"); a(f"s_mul_i32 {sS}, {sT0}, 3"); a(f"s_sub_u32 {sS}, s5, {sS}")
    a(f"s_lshr_b32 {sROW}, {sT0}, 1"); a(f"s_lshl_b32 {sROW}, {sROW}, 3"); a(f"s_add_u32 {sROW}, {sROW}, s4")
    a(f"s_and_b32 {sT0}, {sT0}, 1"); a(f"s_lshl_b32 {sT0}, {sT0}, 5"); a(f"s_add_u32 {sROW}, {sROW}, {sT0}")
    a(f"s_and_b32 {sROW}, {sROW}, 63")
    a(f"s_lshl_b32 {sT0}, {sROW}, 21"); a(f"s_mul_i32 {sT1}, {sS}, {683*1024}"); a(f"s_add_u32 {sT0}, {sT0}, {sT1}")
    a(f"s_cmp_eq_u32 {sS}, 2"); a(f"s_cselect_b32 {sND}, 682, 683" if False else f"s_cselect_b32 {sND}, 1, 0")
    a(f"s_sub_u32 {sND}, 683, {sND}"); a(f"s_lshl_b32 {sT1}, {sND}, 10")
    a(f"v_lshlrev_b32 v8, 4, v0")
    a(f"s_mov_b32 {sOFF}, 0"); a(f"s_movk_i32 {sSTEP}, 8192")
    a(f"s_mov_b64 {sFULL}, -1"); a(f"s_mov_b32 {sDRY}, 0")
    a(f"v_lshrrev_b32 v{vG}, 4, v{vLANE}"); a(f"v_and_b32 v{vC}, 15, v{vLANE}")
    a("s_waitcnt lgkmcnt(0)")
    srd(rKV, pK, sT1, sT0)
    srd(rWS, pWS, WS_SIZE)
    a(f"s_cmp_lt_u32 s2, 64"); a("s_cbranch_scc1 L_service")

    vOFF = 8; vQ = 10; vACC = 14; vBOP = 18; vMX = 26; vL = 27; vT = 28; vFLG = 32; vFW = 34; vSC = 36; vP = 44; vRING = 64
    stamp(0)
    qld = [f"buffer_load_dwordx4 {V(vP,4)}, v{vT+2}, {S(rWS)}, {sT2} offen sc1", f"buffer_load_dwordx4 {V(vP+4,4)}, v{vT+2}, {S(rWS)}, {sT2} offen offset:2048 sc1"]
    def setup():
        a(f"v_lshlrev_b32 v{vT}, 2, v{vLANE}"); a(f"v_cmp_gt_u32 vcc, 16, v{vLANE}"); a(f"v_cndmask_b32 v{vT+2}, 0, -1, vcc")
        a("s_mov_b64 exec, 0x3ffff")
        a(f"ds_write_b32 v{vT}, v{vT+2} offset:{L_ST}")
        a("s_mov_b64 exec, -1")
        srd(rX, pX, 2560); srd(rDBG, pDBG, 256); srd(rOUT, pOUT, 2560)
        a(f"s_add_u32 s{sVB}, s{pV}, {sT0}"); a(f"s_addc_u32 s{sVB+1}, s{pV+1}, 0")
        a(f"s_mul_i32 {sREC}, {sROW}, 3"); a(f"s_add_u32 {sREC}, {sREC}, {sS}")
        a("s_waitcnt lgkmcnt(0)")
        a("s_barrier")
        a(f"v_and_b32 v9, 1, v{vC}"); a("v_lshlrev_b32 v9, 4, v9"); a("v_mov_b32 v7, 0xffff"); a("v_lshlrev_b32 v9, v9, v7")
        a(f"v_lshrrev_b32 v7, 1, v{vC}")
        for r in range(4):
            a(f"v_cmp_eq_u32 vcc, {r}, v7"); a(f"v_cndmask_b32 v{vMASK+r}, 0, v9, vcc")
        a(f"v_lshlrev_b32 v{vFLG+1}, 2, v{vLANE}"); a(f"v_and_b32 v{vFLG+1}, 0x7f, v{vFLG+1}")
        a(f"v_mov_b32 v{vT+1}, 0")
        a(f"s_and_b32 {sT2}, {sROW}, 31"); a(f"s_lshl_b32 {sT2}, {sT2}, 12"); a(f"s_lshr_b32 {sT3}, {sROW}, 5"); a(f"s_lshl_b32 {sT3}, {sT3}, 10")
        a(f"s_add_u32 {sT2}, {sT2}, {sT3}"); a(f"s_add_u32 {sT2}, {sT2}, {OFF_QP}")
        a(f"v_lshlrev_b32 v{vT+2}, 4, v{vLANE}")
        a(f"v_bfe_u32 v{vT+3}, v{vLANE}, 1, 4"); a(f"v_lshlrev_b32 v{vT+3}, 4, v{vT+3}")
        a(f"v_lshrrev_b32 v{vT}, 5, v{vLANE}"); a(f"v_lshl_add_u32 v{vT+3}, v{vT}, 3, v{vT+3}")
        a(f"v_and_b32 v{vT}, 1, v{vLANE}"); a(f"v_lshl_add_u32 v{vT+3}, v{vT}, 2, v{vT+3}")
        a(f"v_lshlrev_b32 v{vT}, 4, v{vC}")
        a(f"s_cmp_lg_u32 {sWAVE}, {QW}"); a("s_cbranch_scc1 L_p1")
        a(f"s_mov_b32 {sT3}, {OFF_EP}")
        a(f"buffer_load_dword v{vFW}, v{vT+1}, {S(rWS)}, {sT3} offen sc1")
        a.label("L_p1")
    def q_issue():
        a(f"s_cmp_lg_u32 {sWAVE}, {QW}"); a("s_cbranch_scc1 L_p2")
        for l in qld: a(l)
        a.label("L_p2")
    def q_chk():
        a(f"v_xor_b32 v{vP+1}, {sTAG}, v{vP+1}"); a(f"v_xor_b32 v{vP+3}, {sTAG}, v{vP+3}"); a(f"v_xor_b32 v{vP+5}, {sTAG}, v{vP+5}"); a(f"v_xor_b32 v{vP+7}, {sTAG}, v{vP+7}")
        a(f"v_or3_b32 v{vP+1}, v{vP+1}, v{vP+3}, v{vP+5}"); a(f"v_or_b32 v{vP+1}, v{vP+1}, v{vP+7}")
        a(f"v_cmp_ne_u32 vcc, 0, v{vP+1}")
    def q_take():
        a(f"s_cmp_lg_u32 {sWAVE}, {QW}"); a("s_cbranch_scc1 L_p3")
        mktag(vFW)
        q_chk()
        a("s_cbranch_vccz L_qok")
        def q_body():
            a("s_waitcnt vmcnt(0)"); q_chk()
        poll("L_qpoll", qld, q_body)
        stamp(9)
        a.label("L_qok")
        a(f"v_add_f32 v{vP}, v{vP}, v{vP+4}"); a(f"v_add_f32 v{vP+2}, v{vP+2}, v{vP+6}")
        a(f"v_cvt_pk_bf16_f32 v{vP}, v{vP}, v{vP+2}"); a(f"v_mov_b32 v{vP+1}, 1")
        a(f"ds_write_b32 v{vT+3}, v{vP} offset:{L_Q}")
        a(f"ds_write_b32 v{vT+1}, v{vP+1} offset:{L_CNT+4}")
        a.label("L_p3")
    def q_get():
        stamp(8)
        def b():
            a("s_waitcnt lgkmcnt(0)"); a(f"v_cmp_eq_u32 vcc, 0, v{vP}")
        poll("L_qget", [f"ds_read_b32 v{vP}, v{vT+1} offset:{L_CNT+4}", f"ds_read_b128 {V(vQ,4)}, v{vT} offset:{L_Q}"], b)
        a(f"v_and_b32 v{vT}, 3, v{vC}")
        a(f"v_cmp_eq_u32 {sM0}, 1, v{vT}"); a(f"v_cmp_eq_u32 {sM1}, 2, v{vT}"); a(f"v_cmp_eq_u32 {sM2}, 3, v{vT}")
        a(f"s_mov_b32 {sT3}, {f32(128 ** -0.5)}")
        stamp(1)
    def side():
        def st_l():
            a("s_waitcnt lgkmcnt(0)")
            a(f"v_cmp_eq_u32 vcc, -1, v{vP+1}")
        poll("L_side", [f"ds_read_b64 {V(vP,2)}, v{vFW+1} offset:{L_ST}"], st_l)
        a(f"v_mov_b32 v{vP+2}, v{vP}")
        for mod in ROWRED[:3]: a(f"v_max_f32_dpp v{vP+2}, v{vP+2}, v{vP+2} {mod} {DPPF}")
        a(f"v_sub_f32 v{vFW}, v{vMX}, v{vP+2}"); a(f"v_sub_f32 v{vP}, v{vP}, v{vP+2}")
        a(f"v_mul_f32 v{vFW}, {sT3}, v{vFW}"); a(f"v_mul_f32 v{vP}, {sT3}, v{vP}")
        a(f"v_exp_f32 v{vFW}, v{vFW}"); a(f"v_exp_f32 v{vP}, v{vP}")
        a(f"v_mul_f32 v{vP+3}, v{vP}, v{vP+1}")
        for mod in ROWRED[:3]: a(f"v_add_f32_dpp v{vP+3}, v{vP+3}, v{vP+3} {mod} {DPPF}")
        a(f"v_cmp_eq_u32 vcc, 0, v{vFLG}")
        a("s_cbranch_vccz L_flgok")
        def fl_b():
            a("s_waitcnt vmcnt(0)"); a(f"v_cmp_eq_u32 vcc, 0, v{vFLG}")
        poll("L_flg", [f"buffer_load_dword v{vFLG}, v{vFLG+1}, {S(rDBG)}, 0 offen sc1"], fl_b)
        a.label("L_flgok")
        a(f"s_cmp_lg_u32 {sWAVE}, 0"); a("s_cbranch_scc1 L_side_x")
        a("s_mov_b64 exec, 1")
        a(f"buffer_store_dwordx2 {V(vP+2,2)}, v{vT+1}, {S(rWS)}, {sT1} offen sc1")
        a("s_mov_b64 exec, -1")
        a.label("L_side_x")
    W = []
    def plain(lines, cost=1):
        for l in lines: W.append((cost, None, (lambda k, l=l: a(l))))
    def capture(fn):
        keep = a.lines; a.lines = []; fn(); out = a.lines; a.lines = keep; return out
    W.append((12, None, lambda k: q_get()))
    for n in range(NSTEP):
        j = n & 15
        def kstep(k, j=j):
            a(f"v_dot2_f32_bf16 v{vP+j}, v{k}, v{vQ}, 0")
            for r in range(1, 4): a(f"v_dot2_f32_bf16 v{vP+j}, v{k+r}, v{vQ+r}, v{vP+j}")
        W.append((6, n, kstep))
        if j == 15 or n == NSTEP - 1:
            g = n >> 4
            def red():
                for j in range(8): a(f"v_add_f32_dpp v{vP+j}, v{vP+j}, v{vP+j} row_ror:8 row_mask:0xf bank_mask:0x3")
                if n & 15 >= 8:
                    for j in range(8): a(f"v_add_f32_dpp v{vP+j}, v{vP+j+8}, v{vP+j+8} row_ror:8 row_mask:0xf bank_mask:0xc")
                for j in range(4): a(f"v_add_f32_dpp v{vP+j}, v{vP+j}, v{vP+j} row_shl:4 row_mask:0xf bank_mask:0x5")
                for j in range(4): a(f"v_add_f32_dpp v{vP+j}, v{vP+j+4}, v{vP+j+4} row_shr:4 row_mask:0xf bank_mask:0xa")
                for mod in ("quad_perm:[2,3,0,1]", "quad_perm:[1,0,3,2]"):
                    for j in range(4): a(f"v_add_f32_dpp v{vP+j}, v{vP+j}, v{vP+j} {mod} {DPPF}")
                a(f"v_cndmask_b32 v{vP}, v{vP}, v{vP+1}, {sM0}")
                a(f"v_cndmask_b32 v{vP}, v{vP}, v{vP+2}, {sM1}")
                a(f"v_cndmask_b32 v{vP}, v{vP}, v{vP+3}, {sM2}")
                bf16r(f"v{vP}", f"v{vP}")
                a(f"v_mul_f32 v{vP}, {sT3}, v{vP}")
                bf16r(f"v{vSC+g}", f"v{vP}")
            plain(capture(red))
    W.append((1, None, lambda k: stamp(2)))
    def soft():
        a(f"buffer_load_dword v{vFLG}, v{vFLG+1}, {S(rDBG)}, 0 offen sc1")
        a(f"s_sub_u32 {sT0}, {sND}, {sWAVE}"); a(f"s_sub_u32 {sT0}, {sT0}, {16*(NG-1)*8}")
        a(f"v_lshlrev_b32 v{vT}, 3, v{vC}"); a(f"v_cmp_gt_u32 vcc, {sT0}, v{vT}"); a(f"v_mov_b32 v{vT}, 0xff800000")
        a(f"v_cndmask_b32 v{vSC+NG-1}, v{vT}, v{vSC+NG-1}, vcc")
        a(f"v_max3_f32 v{vMX}, v{vSC}, v{vSC+1}, v{vSC+2}")
        a(f"v_max3_f32 v{vMX}, v{vMX}, v{vSC+3}, v{vSC+4}"); a(f"v_max_f32 v{vMX}, v{vMX}, v{vSC+5}")
        wave_reduce("v_max_f32", [vMX], [vT])
        a(f"s_mov_b32 {sT3}, {f32(LOG2E)}")
        for i in range(NG): a(f"v_sub_f32 v{vSC+i}, v{vSC+i}, v{vMX}")
        for i in range(NG): a(f"v_mul_f32 v{vSC+i}, {sT3}, v{vSC+i}")
        for i in range(NG): a(f"v_exp_f32 v{vSC+i}, v{vSC+i}")
        a(f"v_add_f32 v{vL}, v{vSC}, v{vSC+1}")
        for i in range(2, NG): a(f"v_add_f32 v{vL}, v{vL}, v{vSC+i}")
        for i in range(NG): a(f"v_cvt_pk_bf16_f32 v{vSC+i}, v{vSC+i}, v{vSC+i}")
        wave_reduce("v_add_f32", [vL], [vT])
        a(f"s_lshl_b32 {sT0}, {sWAVE}, 3"); a(f"v_mov_b32 v{vT}, {sT0}")
        a(f"ds_write_b64 v{vT}, {V(vMX,2)} offset:{L_ST}")
        a(f"v_lshlrev_b32 v{vT}, 5, v{vC}"); a(f"v_lshl_add_u32 v{vT}, v{vG}, 4, v{vT}")
        a(f"s_lshl_b32 {sT0}, {sWAVE}, 9"); a(f"v_add_u32 v{vT}, {sT0}, v{vT}")
        a(f"v_mov_b32 v{vT+3}, 1")
        a(f"v_and_b32 v{vFW+1}, 7, v{vLANE}"); a(f"v_lshlrev_b32 v{vFW+1}, 3, v{vFW+1}")
        a(f"s_lshl_b32 {sT0}, {sREC}, 9")
        a(f"s_lshl_b32 {sT1}, {sROW}, 2"); a(f"s_add_u32 {sT1}, {sT1}, {sS}"); a(f"s_lshl_b32 {sT1}, {sT1}, 3"); a(f"s_add_u32 {sT1}, {sT1}, {OFF_ST}")
    plain(capture(soft))
    for n in range(NSTEP):
        if n == SIDEAT: W.append((BUD, None, lambda k: side()))
        def bop(n):
            bo = vBOP + 4 * (n & 1)
            for r in range(4): a(f"v_and_b32_dpp v{bo+r}, v{vSC+(n>>4)}, v{vMASK+r} row_newbcast:{n&15} {DPPF}")
        if n == 0: W.append((4, None, lambda k: bop(0)))
        def vstep(k, n=n):
            bo = vBOP + 4 * (n & 1)
            a(f"v_mfma_f32_16x16x32_bf16 {V(vACC,4)}, {V(bo,4)}, {V(k,4)}, {V(vACC,4) if n else 0}")
            if n + 1 < NSTEP: bop(n + 1)
        W.append((6, NSTEP + n, vstep))
    NL = 2 * NSTEP
    free = list(range(R)); slot_of = {}
    issued = 0; known = 0; wi = 0
    def depth(i):
        if DPAT and i < NL - NEND: return DPAT[i % len(DPAT)]
        if i < QSTART: return DP
        if i >= NL - NEND: return DE
        return DK if i < NSTEP else DV
    def run_work(budget, force_need=False):
        nonlocal wi, known
        while wi < len(W) and budget > 0:
            cost, need, fn = W[wi]
            if need is not None:
                if need >= issued: return
                if need >= known:
                    if not force_need: return
                    a(f"s_waitcnt vmcnt({issued-1-need})"); known = need + 1
                fn(vRING + 4 * slot_of[need]); free.append(slot_of.pop(need))
            else:
                fn(None)
            budget -= cost; wi += 1
    while issued < NL:
        d = depth(issued)
        if not free: run_work(1, True)
        while not free: run_work(1, True)
        if issued >= d:
            a(f"s_waitcnt vmcnt({d-1})"); known = max(known, issued - d + 1)
        if issued == NSTEP:
            a(f"s_mov_b32 s{rKV}, s{sVB}"); a(f"s_mov_b32 s{rKV+1}, s{sVB+1}"); a(f"s_mov_b32 {sOFF}, 0")
        sl = free.pop(0); slot_of[issued] = sl
        a(f"buffer_load_dwordx4 {V(vRING+4*sl,4)}, v{vOFF}, {S(rKV)}, {sOFF} offen {kvpol}")
        a(f"s_add_u32 {sOFF}, {sOFF}, {sSTEP}")
        issued += 1
        if issued == DP: setup()
        if issued == QAT: q_issue()
        if issued == QAT + DP + 1: q_take()
        if issued >= QSTART: run_work(BUD)
    run_work(1 << 30, True)
    assert wi == len(W)
    a(f"v_pk_mul_f32 {V(vACC,2)}, {V(vACC,2)}, {V(vFW,2)} op_sel_hi:[1,0]")
    a(f"v_pk_mul_f32 {V(vACC+2,2)}, {V(vACC+2,2)}, {V(vFW,2)} op_sel_hi:[1,0]")
    a("s_mov_b64 exec, 0xffffffff")
    a(f"ds_write_b128 v{vT}, {V(vACC,4)} offset:{L_OP}")
    a("s_mov_b64 exec, 1")
    a(f"ds_add_rtn_u32 v{vT+3}, v{vT+1}, v{vT+3} offset:{L_CNT}")
    a("s_mov_b64 exec, -1")
    a(f"v_and_b32 v{vBOP}, 0x1ff, v{vT+2}"); a(f"v_lshrrev_b32 v{vBOP+1}, 5, v{vLANE}"); a(f"v_lshl_add_u32 v{vBOP}, v{vBOP+1}, 3, v{vBOP}")
    stamp(3)
    a("s_waitcnt lgkmcnt(0)")
    a(f"v_readfirstlane_b32 {sT2}, v{vT+3}")
    a(f"s_cmp_lg_u32 {sT2}, 7"); a("s_cbranch_scc1 L_stail")
    for w in range(4): a(f"ds_read_b128 {V(vP+4*w,4)}, v{vT+2} offset:{L_OP+1024*w}")
    a("s_waitcnt lgkmcnt(2)")
    a(f"v_pk_add_f32 {V(vP,2)}, {V(vP,2)}, {V(vP+4,2)}"); a(f"v_pk_add_f32 {V(vP+2,2)}, {V(vP+2,2)}, {V(vP+6,2)}")
    a("s_waitcnt lgkmcnt(0)")
    a(f"v_pk_add_f32 {V(vP+8,2)}, {V(vP+8,2)}, {V(vP+12,2)}"); a(f"v_pk_add_f32 {V(vP+10,2)}, {V(vP+10,2)}, {V(vP+14,2)}")
    a(f"v_pk_add_f32 {V(vP,2)}, {V(vP,2)}, {V(vP+8,2)}"); a(f"v_pk_add_f32 {V(vP+2,2)}, {V(vP+2,2)}, {V(vP+10,2)}")
    a(f"v_permlane32_swap_b32 v{vP}, v{vP+2}"); a(f"v_permlane32_swap_b32 v{vP+1}, v{vP+3}")
    a(f"v_pk_add_f32 {V(vP,2)}, {V(vP,2)}, {V(vP+2,2)}")
    a(f"buffer_store_dwordx2 {V(vP,2)}, v{vBOP}, {S(rWS)}, {sT0} offen sc1")
    stamp(4)
    a.label("L_stail")
    a(f"s_cmp_ge_u32 s15, {0 if norole else 40}"); a("s_cbranch_scc1 L_exit")
    oA = 8; oY = 16; oZ = 20; oX = 24; oT = 28
    a(f"s_lshr_b32 {sT0}, {sWAVE}, 2"); a(f"s_mul_i32 {sT0}, {sT0}, 1280"); a(f"s_and_b32 {sT1}, {sWAVE}, 3"); a(f"s_lshl_b32 {sT1}, {sT1}, 3")
    a(f"s_add_u32 {sT1}, {sT1}, {sT0}"); a(f"s_lshl_b32 {sT0}, s15, 5"); a(f"s_add_u32 {sT1}, {sT1}, {sT0}")
    a(f"v_lshlrev_b32 v{oA}, 1, v{vG}")
    a(f"buffer_load_ushort v{oX}, v{oA}, {S(rX)}, {sT1} offen")
    a(f"s_lshl_b32 {sT0}, s15, 7"); a(f"s_lshl_b32 {sT2}, {sWAVE}, 4"); a(f"s_add_u32 {sT0}, {sT0}, {sT2}")
    a(f"s_add_u32 {sOFF}, {sT0}, {OFF_YP}"); a(f"s_add_u32 {sCNT}, {sT0}, {OFF_ZP}")
    a(f"v_and_b32 v{oA+1}, 7, v{vLANE}"); a(f"v_mul_u32_u24 v{oA+1}, 5120, v{oA+1}"); a(f"v_lshl_add_u32 v{oA+1}, v{vG}, 2, v{oA+1}")
    a(f"v_mul_u32_u24 v{oA+2}, 5120, v{vLANE}")
    a(f"v_cmp_gt_u32 {sM0}, 54, v{vLANE}")
    a(f"v_cmp_eq_u32 {sM1}, 0, v{vC}")
    for r in range(4): a(f"v_mov_b32 v{oZ+r}, 0")
    def y_body():
        a("s_waitcnt vmcnt(0)")
        a(f"v_cmp_u_f32 vcc, v{oY}, v{oY}")
    poll("L_O_poll1", [f"buffer_load_dword v{oY}, v{oA+1}, {S(rWS)}, {sOFF} offen sc1"], y_body, sleep=gsleep)
    for mod in ROWRED[:3]: a(f"v_add_f32_dpp v{oY}, v{oY}, v{oY} {mod} {DPPF}")
    a(f"v_lshlrev_b32 v{oX}, 16, v{oX}")
    bf16r(f"v{oY}", f"v{oY}")
    a(f"v_add_f32 v{oY}, v{oX}, v{oY}")
    bf16r(f"v{oY}", f"v{oY}")
    stamp(5)
    exset(sM0)
    def z_body():
        a("s_waitcnt vmcnt(0)")
        a(f"v_pk_add_f32 {V(oT,2)}, {V(oZ,2)}, {V(oZ+2,2)}")
        a(f"v_cmp_u_f32 vcc, v{oT}, v{oT+1}")
    poll("L_O_poll2", [f"buffer_load_dwordx4 {V(oZ,4)}, v{oA+2}, {S(rWS)}, {sCNT} offen sc1"], z_body, sleep=osleep)
    exfull()
    stamp(6)
    a(f"v_permlane16_swap_b32 v{oZ}, v{oZ+1}"); a(f"v_permlane16_swap_b32 v{oZ+2}, v{oZ+3}")
    a(f"v_add_f32 v{oZ}, v{oZ}, v{oZ+1}"); a(f"v_add_f32 v{oZ+2}, v{oZ+2}, v{oZ+3}")
    a(f"v_permlane32_swap_b32 v{oZ}, v{oZ+2}")
    a(f"v_add_f32 v{oZ}, v{oZ}, v{oZ+2}")
    for mod in ROWRED: a(f"v_add_f32_dpp v{oZ}, v{oZ}, v{oZ} {mod} {DPPF}")
    bf16r(f"v{oZ}", f"v{oZ}")
    a(f"v_add_f32 v{oZ}, v{oY}, v{oZ}")
    a(f"v_cvt_pk_bf16_f32 v{oZ}, v{oZ}, v{oZ}")
    exset(sM1)
    a(f"buffer_store_short v{oZ}, v{oA}, {S(rOUT)}, {sT1} offen")
    exfull()
    stamp(7)
    a("s_branch L_exit")


    a.label("L_service")
    hX = 10; hC = 30; hT = 32; hSEL = 40; hACC = 44; hAOP = 48; hW = 64
    stamp(0)
    srd(rX, pX, 2560); srd(rDBG, pDBG, 256); srd(rB2, pWS, CLR_END)
    a(f"s_mov_b32 {sSI}, s2"); a(f"s_mov_b32 {sLW}, {L_W}"); a(f"s_movk_i32 {sC1280}, 1280")
    a("v_mov_b32 v8, 0"); a(f"s_mov_b32 {sT0}, {OFF_EP}")
    a(f"buffer_load_dword v56, v8, {S(rWS)}, {sT0} offen sc1")
    a(f"v_mul_u32_u24 v8, 40, v{vLANE}")
    for i in range(5): a(f"buffer_load_dwordx2 {V(hX+4*i,2)}, v8, {S(rX)}, 0 offen offset:{8*i}")
    a(f"s_and_b32 {sT0}, {sSI}, 1"); a(f"s_mul_i32 {sT0}, {sT0}, 320"); a(f"s_mul_i32 {sT1}, {sWAVE}, 40"); a(f"s_add_u32 {sT0}, {sT0}, {sT1}")
    a(f"v_lshl_add_u32 v9, v{vC}, 2, v{vG}"); a("v_lshlrev_b32 v9, 1, v9")
    a(f"s_lshl_b32 {sT1}, {sT0}, 1")
    a(f"buffer_load_ushort v{hC}, v9, {S(rX)}, {sT1} offen"); a(f"buffer_load_ushort v{hC+1}, v9, {S(rX)}, {sT1} offen offset:1280")
    a(f"s_lshr_b32 {sT1}, {sSI}, 1"); a(f"s_lshl_b32 {sT1}, {sT1}, 8")
    srd(rA, pWQ, 640 * 8192 - 31 * 256, sT1)
    a(f"v_lshlrev_b32 v8, 13, v{vG}"); a(f"v_lshl_add_u32 v8, v{vC}, 4, v8")
    a(f"s_lshl_b32 {sOFF}, {sT0}, 13"); a(f"s_mov_b32 {sSTEP}, 32768")
    for n in range(10):
        a(f"buffer_load_dwordx4 {V(hW+4*n,4)}, v8, {S(rA)}, {sOFF} offen {wqpol}")
        a(f"s_add_u32 {sOFF}, {sOFF}, {sSTEP}")
    a(f"v_lshrrev_b32 v8, 3, v{vC}"); a("v_mul_u32_u24 v8, 0x0202, v8"); a("v_add_u32 v8, 0x0100, v8")
    a("v_or_b32 v9, 0x0c0c0000, v8"); a("v_lshlrev_b32 v8, 16, v8"); a("v_or_b32 v8, 0x0c0c, v8")
    a(f"v_and_b32 v57, 1, v{vC}"); a("v_cmp_eq_u32 vcc, 1, v57"); a("v_cndmask_b32 v8, v9, v8, vcc")
    a(f"v_bfe_u32 v9, v{vC}, 1, 2"); a("v_mov_b32 v57, 0x0c0c0c0c")
    for r in range(4):
        a(f"v_cmp_eq_u32 vcc, {r}, v9"); a(f"v_cndmask_b32 v{hSEL+r}, v57, v8, vcc")
    a("s_waitcnt vmcnt(10)")
    mktag(56)
    for i in range(5):
        b_ = hX + 4 * i
        a(f"v_and_b32 v{b_+3}, 0xffff0000, v{b_+1}"); a(f"v_lshlrev_b32 v{b_+2}, 16, v{b_+1}")
        a(f"v_and_b32 v{b_+1}, 0xffff0000, v{b_}"); a(f"v_lshlrev_b32 v{b_}, 16, v{b_}")
    a(f"v_pk_add_f32 {V(hT,2)}, {V(hX,2)}, {V(hX+2,2)}")
    for i in range(4, 20, 2): a(f"v_pk_add_f32 {V(hT,2)}, {V(hT,2)}, {V(hX+i,2)}")
    a(f"v_add_f32 v{hT}, v{hT}, v{hT+1}")
    wave_reduce("v_add_f32", [hT], [hT + 1], half=True)
    a(f"v_mul_f32 v{hT}, {f32(1/640)}, v{hT}")
    for i in range(0, 20, 2): a(f"v_pk_add_f32 {V(hX+i,2)}, {V(hX+i,2)}, {V(hT,2)} op_sel_hi:[1,0] neg_lo:[0,1] neg_hi:[0,1]")
    a(f"v_pk_mul_f32 {V(hT+2,2)}, {V(hX,2)}, {V(hX,2)}")
    for i in range(2, 20, 2): a(f"v_pk_fma_f32 {V(hT+2,2)}, {V(hX+i,2)}, {V(hX+i,2)}, {V(hT+2,2)}")
    a(f"v_add_f32 v{hT+2}, v{hT+2}, v{hT+3}")
    wave_reduce("v_add_f32", [hT + 2], [hT + 1], half=True)
    a(f"v_mul_f32 v{hT+2}, {f32(1/640)}, v{hT+2}")
    for l in ln_finish_l(hT, hT + 2, hT + 4): a(l)
    for r in (hT, hT + 2, hT + 4): a(f"v_mov_b32 v{r+1}, v{r}")
    for r in (hT, hT + 2, hT + 4): a(f"v_permlane32_swap_b32 v{r}, v{r+1}")
    for b in range(2): a(f"v_lshlrev_b32 v{hC+b}, 16, v{hC+b}")
    for b in range(2): a(f"v_sub_f32 v{hC+b}, v{hC+b}, v{hT+b}")
    for b in range(2): bf16r(f"v{hC+b}", f"v{hC+b}")
    for b in range(2): a(f"v_mul_f32 v{hT+6+b}, v{hC+b}, v{hT+4+b}")
    for b in range(2): a(f"v_fma_f32 v{hC+b}, -v{hT+6+b}, v{hT+2+b}, v{hC+b}")
    for b in range(2): a(f"v_fma_f32 v{hC+b}, v{hC+b}, v{hT+4+b}, v{hT+6+b}")
    a(f"v_cvt_pk_bf16_f32 v{hC}, v{hC}, v{hC+1}")
    for n in range(10):
        bo = hAOP + 4 * (n & 1)
        a(f"v_mov_b32_dpp v{hC+1}, v{hC} row_newbcast:{n} {DPPF}")
        for r in range(4): a(f"v_perm_b32 v{bo+r}, v{hC+1}, v{hC+1}, v{hSEL+r}")
        a(f"s_waitcnt vmcnt({9-n})")
        a(f"v_mfma_f32_16x16x32_bf16 {V(hACC,4)}, {V(bo,4)}, {V(hW+4*n,4)}, {V(hACC,4) if n else 0}")
    a("v_lshlrev_b32 v8, 4, v0")
    a(f"ds_write_b128 v8, {V(hACC,4)} offset:{L_W}")
    a("v_lshlrev_b32 v9, 3, v0")
    a("s_waitcnt lgkmcnt(0)")
    a("s_barrier")
    a(f"s_cmp_ge_u32 {sWAVE}, 2"); a("s_cbranch_scc1 L_s_nopub")
    for w in range(8): a(f"ds_read_b64 {V(hX+2*w,2)}, v9 offset:{L_W+1024*w}")
    a(f"s_lshl_b32 {sT0}, {sSI}, 11"); a(f"s_add_u32 {sT0}, {sT0}, {OFF_QP}")
    a("s_waitcnt lgkmcnt(0)")
    for st_ in (2, 4, 8):
        for b_ in range(0, 16, 2 * st_): a(f"v_pk_add_f32 {V(hX+b_,2)}, {V(hX+b_,2)}, {V(hX+b_+st_,2)}")
    a(f"v_mov_b32 v{hX+2}, v{hX+1}"); a(f"v_mov_b32 v{hX+1}, {sTAG}"); a(f"v_mov_b32 v{hX+3}, {sTAG}")
    a(f"buffer_store_dwordx4 {V(hX,4)}, v8, {S(rWS)}, {sT0} offen sc1")
    a.label("L_s_nopub")
    stamp(1)
    a(f"s_cmp_lt_u32 {sSI}, 56"); a("s_cbranch_scc1 L_s_noclear")
    a(f"s_cmp_lt_u32 {sWAVE}, 4"); a("s_cbranch_scc1 L_s_noclear")
    for r in range(4): a(f"v_mov_b32 v{12+r}, -1")
    a(f"v_lshlrev_b32 v8, 4, v{vLANE}")
    a(f"s_lshl_b32 {sT0}, {sSI}, 2"); a(f"s_add_u32 {sT0}, {sT0}, {sWAVE}"); a(f"s_sub_u32 {sT0}, {sT0}, {56*4+4}")
    a(f"s_lshl_b32 {sOFF}, {sT0}, 10"); a(f"s_mov_b32 {sCNT}, 13")
    a.label("L_s_clr")
    a(f"buffer_store_dwordx4 v[12:15], v8, {S(rB2)}, {sOFF} offen sc1")
    a(f"s_add_u32 {sOFF}, {sOFF}, 32768")
    a(f"s_sub_u32 {sCNT}, {sCNT}, 1"); a(f"s_cmp_lg_u32 {sCNT}, 0"); a("s_cbranch_scc1 L_s_clr")
    a(f"s_lshl_b32 {sT0}, {sT0}, 2")
    a("v_mov_b32 v9, 1"); a("v_mov_b32 v10, 0")
    a("s_waitcnt vmcnt(0)")
    a("s_mov_b64 exec, 1")
    a(f"buffer_store_dword v9, v10, {S(rDBG)}, {sT0} offen sc1")
    a("s_mov_b64 exec, -1")
    a.label("L_s_noclear")
    if norole: a("s_branch L_exit")
    a("s_barrier")
    a("v_lshlrev_b32 v8, 2, v0"); a("v_mov_b32 v9, 0x3f803f80"); a("v_mov_b32 v10, 0")
    a("v_cmp_gt_u32 vcc, 320, v0"); a(f"s_and_saveexec_b64 {sM0}, vcc")
    a(f"ds_write_b32 v8, v9 offset:{L_ONE}")
    a("v_cmp_gt_u32 vcc, 80, v0"); a("s_and_b64 exec, exec, vcc")
    a(f"ds_write_b32 v8, v10 offset:{L_AC}")
    a("s_mov_b64 exec, -1")
    def dma_loop(lbl, srdr, voff, sstep, mstep, n):
        a(f"s_mov_b32 {sCNT}, {n}")
        a.label(lbl)
        if not nodma: a(f"buffer_load_dwordx4 v{voff}, {S(srdr)}, {sOFF} offen {wpol} lds")
        a(f"s_add_u32 {sOFF}, {sOFF}, {sstep}"); a(f"s_add_u32 m0, m0, {mstep}")
        a(f"s_waitcnt vmcnt({dmad})")
        a(f"s_sub_u32 {sCNT}, {sCNT}, 1"); a(f"s_cmp_lg_u32 {sCNT}, 0"); a(f"s_cbranch_scc1 {lbl}")
    def kbcb():
        a(f"s_mul_i32 {sT0}, {sRI}, 52429"); a(f"s_lshr_b32 {sT0}, {sT0}, 18")
        a(f"s_mul_i32 {sT1}, {sT0}, 5"); a(f"s_sub_u32 {sT1}, {sRI}, {sT1}")
    a(f"s_sub_u32 {sRI}, {sSI}, {R_FIRST}")
    a(f"s_and_b32 {sT1}, {sSI}, 7"); a(f"s_lshr_b32 {sT2}, {sSI}, 4"); a(f"s_lshl_b32 {sT2}, {sT2}, 3"); a(f"s_add_u32 {sT1}, {sT1}, {sT2}")
    a(f"s_lshl_b32 {sT1}, {sT1}, 1"); a(f"s_lshr_b32 {sT2}, {sSI}, 3"); a(f"s_and_b32 {sT2}, {sT2}, 1"); a(f"s_add_u32 {sFI}, {sT1}, {sT2}")
    a(f"s_lshr_b32 {sT2}, {sWAVE}, 1"); a(f"s_and_b32 {sT2}, {sT2}, 1"); a(f"s_lshl_b32 {sT2}, {sT2}, 3")
    a(f"v_lshlrev_b32 v9, 1, v{vG}"); a(f"v_or_b32 v9, {sT2}, v9"); a(f"v_xor_b32 v9, v9, v{vC}")
    a(f"v_lshlrev_b32 v9, 4, v9"); a(f"v_mul_u32_u24 v11, 1280, v{vG}"); a(f"v_add_u32 v11, v11, v9")
    a(f"v_lshrrev_b32 v12, 2, v{vLANE}"); a("v_and_b32 v12, 7, v12"); a("v_lshlrev_b32 v12, 1, v12")
    a(f"v_bfe_u32 v13, v{vLANE}, 1, 1"); a("v_xor_b32 v12, v12, v13"); a("v_lshlrev_b32 v12, 4, v12")
    a(f"v_and_b32 v13, 1, v{vLANE}"); a("v_lshl_add_u32 v12, v13, 3, v12")
    a(f"v_bfe_u32 v13, v{vLANE}, 2, 2"); a(f"v_lshl_add_u32 v13, v{vG}, 3, v13")
    a("v_lshl_add_u32 v12, v13, 8, v12")
    tF = 192; tO = 164
    a(f"s_cmp_ge_u32 {sRI}, 40"); a("s_cbranch_scc1 L_s_nowo")
    kbcb()
    a(f"s_mul_i32 {sT0}, {sT0}, {512*1280}"); a(f"s_lshl_b32 {sT1}, {sT1}, 8"); a(f"s_add_u32 {sT0}, {sT0}, {sT1}")
    srd(rA, pWO, 4096 * 1280)
    a(f"s_mul_i32 {sOFF}, {sWAVE}, 5120"); a(f"s_add_u32 {sOFF}, {sOFF}, {sT0}")
    a(f"s_lshl_b32 {sT1}, {sWAVE}, 10"); a(f"s_add_u32 m0, {sT1}, {L_W}")
    dma_loop("L_s_wo_l", rA, 11, 8 * 5120, 8192, 16)
    a("s_waitcnt vmcnt(0)")
    a("s_barrier")
    a(f"s_lshl_b32 {sT0}, {sWAVE}, 5")
    a(f"v_xor_b32 v13, {sT0}, v12"); a(f"v_add_u32 v13, {L_W}, v13"); a("v_add_u32 v14, 65536, v13")
    for ks in range(16):
        for hh in range(2):
            a(f"ds_read_b64_tr_b16 {V(tF+4*ks+2*hh,2)}, v{13+(ks>>3)} offset:{(ks&7)*8192+hh*1024}")
    a("s_waitcnt lgkmcnt(0)")
    a("s_barrier")
    a.label("L_s_nowo")
    fGU = 64; fD = 144; fB = 164; fY = 164; fS = 244; fX = 48; fT = 36; fA = 8; fZ = 16; fAD = 42
    a(f"s_cmp_ge_u32 {sFI}, 54"); a("s_cbranch_scc1 L_s_noffn")
    a(f"v_lshrrev_b32 v8, 2, v{vLANE}"); a("v_mul_u32_u24 v8, 3456, v8")
    a(f"v_lshrrev_b32 v9, 4, v{vLANE}"); a("v_and_b32 v9, 2, v9"); a(f"v_and_b32 v10, 3, v{vLANE}"); a("v_xor_b32 v9, v9, v10")
    a("v_lshl_add_u32 v8, v9, 4, v8")
    srd(rA, pWG, 640 * 3456); srd(rB2, pWU, 640 * 3456); srd(rKV, pWD, 1728 * 1280)
    for nm, rr, lo in (("g", rA, L_W), ("u", rB2, L_W + 40960)):
        a(f"s_lshl_b32 {sT0}, {sFI}, 6"); a(f"s_mul_i32 {sOFF}, {sWAVE}, {16*3456}"); a(f"s_add_u32 {sOFF}, {sOFF}, {sT0}")
        a(f"s_lshl_b32 {sT1}, {sWAVE}, 10"); a(f"s_add_u32 m0, {sT1}, {lo}")
        dma_loop(f"L_s_f{nm}_l", rr, 8, 128 * 3456, 8192, 5)
    a(f"s_mul_i32 {sT0}, {sFI}, {32*1280}"); a(f"s_mul_i32 {sOFF}, {sWAVE}, 5120"); a(f"s_add_u32 {sOFF}, {sOFF}, {sT0}")
    a(f"s_lshl_b32 {sT1}, {sWAVE}, 10"); a(f"s_add_u32 m0, {sT1}, {L_W+81920}")
    dma_loop("L_s_fd_l", rKV, 11, 256, 8192, 5)
    a("s_waitcnt vmcnt(0)")
    a("s_barrier")
    for i in range(5):
        a(f"s_mul_i32 {sT2}, {sWAVE}, 5"); a(f"s_add_u32 {sT2}, {sT2}, {i}")
        a(f"s_and_b32 {sT3}, {sT2}, 7"); a(f"s_lshl_b32 {sT3}, {sT3}, 5")
        a(f"v_xor_b32 v13, {sT3}, v12")
        a(f"s_lshr_b32 {sT2}, {sT2}, 3"); a(f"s_lshl_b32 {sT2}, {sT2}, 13"); a(f"s_add_u32 {sT2}, {sT2}, {L_W+81920}")
        a(f"v_add_u32 v13, {sT2}, v13")
        for hh in range(2): a(f"ds_read_b64_tr_b16 {V(fD+4*i+2*hh,2)}, v13 offset:{hh*1024}")
    a(f"s_and_b32 {sT2}, {sWAVE}, 3")
    a(f"v_and_b32 v13, 1, v{vG}"); a("v_lshlrev_b32 v13, 1, v13"); a(f"v_xor_b32 v13, {sT2}, v13"); a("v_lshlrev_b32 v13, 4, v13")
    a(f"v_and_b32 v14, 1, v{vLANE}"); a("v_lshl_add_u32 v13, v14, 3, v13")
    a(f"v_bfe_u32 v14, v{vLANE}, 2, 2"); a(f"v_lshl_add_u32 v14, v{vG}, 3, v14"); a("v_lshl_add_u32 v13, v14, 6, v13")
    a(f"v_bfe_u32 v14, v{vLANE}, 1, 1"); a("v_mul_u32_u24 v14, 40960, v14"); a(f"v_add3_u32 v13, v13, v14, {sLW}")
    for ks in range(20):
        for hh in range(2):
            a(f"ds_read_b64_tr_b16 {V(fGU+4*ks+2*hh,2)}, v13 offset:{ks*2048+hh*256}")
    a(f"s_mul_i32 {sT0}, {sWAVE}, 5")
    a(f"v_lshrrev_b32 v{fT}, 3, v{vLANE}"); a(f"v_add_u32 v{fT}, {sT0}, v{fT}"); a(f"v_and_b32 v{fT+1}, 3, v{vLANE}")
    a(f"v_lshl_add_u32 v{fT}, v{fT}, 2, v{fT+1}"); a(f"v_lshlrev_b32 v{fT}, 3, v{fT}")
    a(f"v_bfe_u32 v{fT+1}, v{vLANE}, 2, 1")
    a(f"v_mad_u32_u24 v{fA}, v{fT+1}, {sC1280}, v{fT}")
    a(f"buffer_load_dwordx2 {V(fX,2)}, v{fA}, {S(rX)}, 0 offen")
    a(f"v_mul_u32_u24 v{fA+1}, 1344, v{fT+1}"); a(f"v_add_u32 v{fA+1}, v{fA+1}, v{fT}")
    a(f"v_lshlrev_b32 v{fA+2}, 4, v{vLANE}")
    a(f"s_mul_i32 s90, {sWAVE}, 640"); a(f"s_add_u32 s90, s90, {OFF_YP}")
    for kb in range(1, 8): a(f"s_add_u32 s{90+kb}, s90, {kb*5120}")
    a(f"v_lshrrev_b32 v{fA+3}, 3, v{vC}"); a(f"v_and_b32 v{fT}, 1, v{vC}"); a(f"v_cmp_eq_u32 vcc, 1, v{fT}"); a(f"v_cndmask_b32 v{fA+3}, v{fA+3}, 2, vcc")
    a(f"v_mul_u32_u24 v{fA+3}, 1344, v{fA+3}"); a(f"v_lshl_add_u32 v{fA+3}, v{vG}, 4, v{fA+3}")
    a(f"v_mul_u32_u24 v{fA+4}, 40, v{vLANE}")
    a(f"v_lshrrev_b32 v{fA+5}, 5, v{vLANE}"); a(f"v_lshlrev_b32 v{fA+5}, 6, v{fA+5}"); a(f"v_lshl_add_u32 v{fA+5}, v{vC}, 1, v{fA+5}")
    a(f"s_lshl_b32 {sT0}, {sWAVE}, 4"); a(f"v_add_u32 v{fA+5}, {sT0}, v{fA+5}")
    a(f"v_lshlrev_b32 v{fT}, 6, v{fT}"); a(f"v_lshrrev_b32 v{fT+1}, 1, v{vC}"); a(f"v_mov_b32 v{fT+2}, 128")
    for i in range(5):
        a(f"v_cmp_eq_u32 vcc, {i}, v{fT+1}"); a(f"v_cndmask_b32 v{fAD+i}, v{fT+2}, v{fT}, vcc"); a(f"v_lshl_add_u32 v{fAD+i}, v{vG}, 4, v{fAD+i}")
    a(f"s_mul_i32 s98, {sFI}, 5120"); a(f"s_mul_i32 {sT2}, {sWAVE}, 640"); a(f"s_add_u32 s98, s98, {sT2}"); a(f"s_add_u32 s98, s98, {OFF_ZP}")
    a("s_waitcnt lgkmcnt(0) vmcnt(0)")
    a(f"v_and_b32 v{fX+3}, 0xffff0000, v{fX+1}"); a(f"v_lshlrev_b32 v{fX+2}, 16, v{fX+1}")
    a(f"v_and_b32 v{fX+1}, 0xffff0000, v{fX}"); a(f"v_lshlrev_b32 v{fX}, 16, v{fX}")
    a.label("L_s_noffn")
    a(f"v_lshlrev_b32 v{fA+6}, 6, v{vC}"); a(f"v_lshl_add_u32 v{fA+6}, v{vG}, 4, v{fA+6}")
    tA = 54; tD = 16; tS = 24; tM = 32; tAC = 20
    a(f"v_lshlrev_b32 v{tA}, 3, v{vLANE}"); a(f"v_mov_b32 v{tA+1}, 0")
    a(f"s_lshr_b32 {sT2}, {sWAVE}, 2"); a(f"s_mul_i32 {sT2}, {sT2}, 1088"); a(f"s_and_b32 {sT3}, {sWAVE}, 3"); a(f"s_lshl_b32 {sT3}, {sT3}, 8"); a(f"s_add_u32 {sT2}, {sT2}, {sT3}")
    a(f"v_lshl_add_u32 v{tA+2}, v{vLANE}, 2, {sT2}")
    a(f"v_and_b32 v{tA+3}, 1, v{vLANE}"); a(f"v_mul_u32_u24 v{tA+3}, 1088, v{tA+3}"); a(f"v_lshl_add_u32 v{tA+3}, v{vG}, 4, v{tA+3}")
    a(f"v_lshlrev_b32 v{tA+4}, 2, v{vLANE}"); a(f"v_and_b32 v{tA+4}, 0x7f, v{tA+4}")
    a(f"s_lshl_b32 {sT2}, 1, {sWAVE}"); a(f"v_mov_b32 v52, {sT2}")
    stamp(2)
    if fst:
        a("s_memtime s[100:101]"); a("s_memrealtime s[4:5]"); a("s_waitcnt lgkmcnt(0)")
    def fl2_b():
        a("s_waitcnt vmcnt(0)"); a(f"v_cmp_eq_u32 vcc, 0, v{tA+5}")
    poll("L_s_flg", [f"buffer_load_dword v{tA+5}, v{tA+4}, {S(rDBG)}, 0 offen sc1"], fl2_b, sleep=8)
    a("s_waitcnt lgkmcnt(0)")
    a("s_barrier")
    if dry:
        a(f"s_mov_b32 {sDRY}, 2"); a(f"s_mov_b64 {sFULL}, 0"); a("s_mov_b64 exec, 0")
    a.label("L_s_tail")
    a(f"s_cmp_ge_u32 {sRI}, 40"); a("s_cbranch_scc1 L_Fgate")
    tR = 180
    kbcb()
    a(f"s_lshr_b32 {sT2}, {sWAVE}, 2"); a(f"s_lshl_b32 {sT2}, {sT2}, 5"); a(f"s_and_b32 {sT3}, {sWAVE}, 3"); a(f"s_add_u32 {sT2}, {sT2}, {sT3}")
    a(f"s_lshl_b32 {sT3}, {sT0}, 2"); a(f"s_add_u32 {sT2}, {sT2}, {sT3}")
    a(f"s_mul_i32 {sOFF}, {sT2}, 1536")
    a(f"s_lshl_b32 {sCNT}, {sT2}, 5"); a(f"s_add_u32 {sCNT}, {sCNT}, {OFF_ST}")
    a(f"s_mul_i32 {sT0}, {sT0}, 5120"); a(f"s_lshl_b32 {sT1}, {sT1}, 10"); a(f"s_add_u32 {sT0}, {sT0}, {sT1}"); a(f"s_add_u32 {sT0}, {sT0}, {OFF_YP}")
    a(f"s_lshl_b32 {sT1}, {sWAVE}, 7"); a(f"s_add_u32 {sT0}, {sT0}, {sT1}")
    a(f"s_mov_b32 {sT3}, {f32(LOG2E)}")
    a(f"v_cmp_gt_u32 {sM1}, 2, v{vC}")
    def st_body():
        a("s_waitcnt vmcnt(0)")
        a(f"v_max3_u32 v{tM}, v{tS}, v{tS+1}, v{tS+2}"); a(f"v_max3_u32 v{tM}, v{tM}, v{tS+3}, v{tS+4}")
        a(f"v_max_u32 v{tM}, v{tM}, v{tS+5}")
        a(f"v_cmp_eq_u32 vcc, -1, v{tM}")
    poll("L_R_pst", [f"buffer_load_dwordx4 {V(tS,4)}, v{tA+1}, {S(rWS)}, {sCNT} offen sc1", f"buffer_load_dwordx2 {V(tS+4,2)}, v{tA+1}, {S(rWS)}, {sCNT} offen offset:16 sc1"], st_body, sleep=16)
    a(f"v_max3_f32 v{tM}, v{tS}, v{tS+2}, v{tS+4}")
    for s in range(3): a(f"v_sub_f32 v{tS+2*s}, v{tS+2*s}, v{tM}")
    for s in range(3): a(f"v_mul_f32 v{tS+2*s}, {sT3}, v{tS+2*s}")
    for s in range(3): a(f"v_exp_f32 v{tS+2*s}, v{tS+2*s}")
    a(f"v_mul_f32 v{tM}, v{tS}, v{tS+1}")
    for s in range(1, 3): a(f"v_fmac_f32 v{tM}, v{tS+2*s}, v{tS+2*s+1}")
    a(f"v_rcp_f32 v{tM}, v{tM}")
    for s in range(3): a(f"v_mul_f32 v{tS+2*s}, v{tS+2*s}, v{tM}")
    for r in range(4): a(f"v_mov_b32 v{tAC+r}, 0")
    stamp(5)
    sMINE, sDONE = sT1, sT2
    a(f"s_mov_b32 {sMINE}, 0"); a(f"s_mov_b32 {sDONE}, 0"); a(f"s_mov_b32 {sSP}, {4*SPIN}")
    a.label("L_R_loop")
    a(f"s_cmp_lg_u32 {sMINE}, 0"); a("s_cbranch_scc1 L_R_chk")
    if rsleep: a(f"s_sleep {rsleep}")
    for s in range(3): a(f"buffer_load_dwordx2 {V(tR+2*s,2)}, v{tA}, {S(rWS)}, {sOFF} offen offset:{512*s} sc1")
    for s in range(3):
        a(f"s_waitcnt vmcnt({2-s})")
        if s == 0: a(f"v_pk_mul_f32 {V(tM,2)}, {V(tR,2)}, {V(tS,2)} op_sel_hi:[1,0]")
        else: a(f"v_pk_fma_f32 {V(tM,2)}, {V(tR+2*s,2)}, {V(tS+2*s,2)}, {V(tM,2)} op_sel_hi:[1,0,1]")
    a(f"v_cmp_u_f32 vcc, v{tM}, v{tM+1}")
    a(f"v_cvt_pk_bf16_f32 v{tM+2}, v{tM}, v{tM+1}")
    a(f"s_cmp_lt_u32 {sSP}, 64"); a(f"s_cselect_b64 {sM2}, 0, -1"); a(f"s_and_b64 vcc, vcc, {sM2}")
    a("s_cbranch_vccnz L_R_chk")
    a(f"ds_write_b32 v{tA+2}, v{tM+2} offset:{L_OB}")
    exset(1)
    a(f"ds_or_b32 v{tA+1}, v52 offset:{L_RM}")
    exfull()
    a(f"s_mov_b32 {sMINE}, 1")
    stamp(6)
    a.label("L_R_chk")
    a(f"ds_read_b32 v{tM+3}, v{tA+1} offset:{L_RM}")
    a(f"s_sub_u32 {sSP}, {sSP}, 1")
    a("s_waitcnt lgkmcnt(0)")
    a(f"v_readfirstlane_b32 {sT3}, v{tM+3}")
    a(f"s_lshr_b32 {sCNT}, {sT3}, 4"); a(f"s_and_b32 {sT3}, {sT3}, {sCNT}"); a(f"s_and_b32 {sT3}, {sT3}, 15")
    a(f"s_cmp_lg_u32 {sDRY}, 0"); a(f"s_cselect_b32 {sT3}, 15, {sT3}")
    a(f"s_cmp_eq_u32 {sSP}, 0"); a(f"s_cselect_b32 {sT3}, 15, {sT3}")
    a(f"s_andn2_b32 {sT3}, {sT3}, {sDONE}")
    a("s_cbranch_scc0 L_R_loop")
    a(f"s_or_b32 {sDONE}, {sDONE}, {sT3}")
    for hh in range(4):
        a(f"s_bitcmp1_b32 {sT3}, {hh}"); a(f"s_cbranch_scc0 L_R_h{hh}")
        for k in range(4): a(f"ds_read_b128 {V(tO+4*k,4)}, v{tA+3} offset:{L_OB+64*(4*hh+k)}")
        for k in range(4):
            a(f"s_waitcnt lgkmcnt({3-k})")
            a(f"v_mfma_f32_16x16x32_bf16 {V(tAC,4)}, {V(tF+4*(4*hh+k),4)}, {V(tO+4*k,4)}, {V(tAC,4)}")
        a.label(f"L_R_h{hh}")
    a(f"s_cmp_lg_u32 {sDONE}, 15"); a("s_cbranch_scc1 L_R_loop")
    exset(sM1)
    a(f"buffer_store_dwordx4 {V(tAC,4)}, v{fA+6}, {S(rWS)}, {sT0} offen sc1")
    exfull()
    stamp(7)
    a("s_branch L_F")
    a.label("L_Fgate")
    a(f"s_mul_i32 {sOFF}, {sSI}, {8*512}"); a(f"s_lshl_b32 {sT0}, {sWAVE}, 9"); a(f"s_add_u32 {sOFF}, {sOFF}, {sT0}")
    def g_body():
        a("s_waitcnt vmcnt(0)"); a(f"v_cmp_u_f32 vcc, v{tM}, v{tM}")
    poll("L_F_gate", [f"buffer_load_dword v{tM}, v{tA+1}, {S(rWS)}, {sOFF} offen sc1"], g_body, sleep=8)
    a.label("L_F")
    a(f"s_cmp_ge_u32 {sFI}, 54"); a("s_cbranch_scc1 L_end")
    a(f"s_mov_b32 {sT3}, 0x3f803f80")
    a(f"v_cmp_gt_u32 {sM0}, 40, v{vLANE}")
    a(f"v_cmp_gt_u32 {sM1}, 10, v{vC}")
    exset(sM0)
    def yp_body():
        for i in range(4):
            a(f"s_waitcnt vmcnt({6-2*i})")
            b_ = fY + 8 * i
            a(f"v_pk_add_f32 {V(b_,2)}, {V(b_,2)}, {V(b_+4,2)}"); a(f"v_pk_add_f32 {V(b_+2,2)}, {V(b_+2,2)}, {V(b_+6,2)}")
            if i & 1:
                a(f"v_pk_add_f32 {V(b_-8,2)}, {V(b_-8,2)}, {V(b_,2)}"); a(f"v_pk_add_f32 {V(b_-6,2)}, {V(b_-6,2)}, {V(b_+2,2)}")
        a(f"v_pk_add_f32 {V(fY,2)}, {V(fY,2)}, {V(fY+16,2)}"); a(f"v_pk_add_f32 {V(fY+2,2)}, {V(fY+2,2)}, {V(fY+18,2)}")
        a(f"v_pk_add_f32 {V(fY+4,2)}, {V(fY,2)}, {V(fY+2,2)}")
        a(f"v_cvt_pk_bf16_f32 v{fY}, v{fY}, v{fY+1}"); a(f"v_cvt_pk_bf16_f32 v{fY+2}, v{fY+2}, v{fY+3}")
        a(f"v_cmp_u_f32 vcc, v{fY+4}, v{fY+5}")
        a(f"v_and_b32 v{fY+1}, 0xffff0000, v{fY}"); a(f"v_lshlrev_b32 v{fY}, 16, v{fY}")
        a(f"v_and_b32 v{fY+3}, 0xffff0000, v{fY+2}"); a(f"v_lshlrev_b32 v{fY+2}, 16, v{fY+2}")
    if stamps: a("s_waitcnt vmcnt(0)")
    poll("L_F_poll", [f"buffer_load_dwordx4 {V(fY+4*kb,4)}, v{fA+2}, {S(rWS)}, s{90+kb} offen sc1" for kb in range(8)], yp_body, sleep=psleep)
    a(f"v_pk_add_f32 {V(fY,2)}, {V(fY,2)}, {V(fX,2)}"); a(f"v_pk_add_f32 {V(fY+2,2)}, {V(fY+2,2)}, {V(fX+2,2)}")
    a(f"v_cvt_pk_bf16_f32 v{fY}, v{fY}, v{fY+1}"); a(f"v_cvt_pk_bf16_f32 v{fY+1}, v{fY+2}, v{fY+3}")
    a(f"ds_write_b64 v{fA+1}, {V(fY,2)} offset:{L_HN}")
    a(f"v_dot2_f32_bf16 v{fY+2}, v{fY}, {sT3}, 0"); a(f"v_dot2_f32_bf16 v{fY+3}, v{fY}, v{fY}, 0")
    a(f"v_dot2_f32_bf16 v{fY+2}, v{fY+1}, {sT3}, v{fY+2}"); a(f"v_dot2_f32_bf16 v{fY+3}, v{fY+1}, v{fY+1}, v{fY+3}")
    a(f"ds_write_b64 v{fA}, {V(fY+2,2)} offset:{L_SP}")
    exfull()
    if not fst: stamp(9)
    cyc(0)
    a("s_waitcnt lgkmcnt(0)")
    dbar()
    cyc(1)
    if fst: a("s_waitcnt lgkmcnt(0)")
    a(f"s_cmp_ge_u32 {sWAVE}, 4"); a("s_cbranch_scc1 L_F_b2")
    s1, s2, sr = fT, fT + 1, fT + 2
    NPR = 6
    for ks in range(NPR): a(f"ds_read_b128 {V(fB+4*ks,4)}, v{fA+3} offset:{L_HN+64*ks}")
    for i in range(5): a(f"ds_read_b64 {V(fS+2*i,2)}, v{fA+4} offset:{L_SP+8*i}")
    VL = []
    VL.append(f"v_pk_add_f32 {V(fS,2)}, {V(fS,2)}, {V(fS+2,2)}"); VL.append(f"v_pk_add_f32 {V(fS+4,2)}, {V(fS+4,2)}, {V(fS+6,2)}")
    VL.append(f"v_pk_add_f32 {V(fS,2)}, {V(fS,2)}, {V(fS+8,2)}"); VL.append(f"v_pk_add_f32 {V(s1,2)}, {V(fS,2)}, {V(fS+4,2)}")
    VL.append(None)
    VL.append(f"v_permlane16_swap_b32 v{s1}, v{s2}")
    VL.append(f"v_add_f32 v{s1}, v{s1}, v{s2}")
    for mod in ROWRED: VL.append(None); VL.append(f"v_add_f32_dpp v{s1}, v{s1}, v{s1} {mod} {DPPF}")
    VL.append(f"v_mul_f32 v{s1}, {f32(1/640)}, v{s1}")
    VL.append(f"v_mov_b32 v{s2}, v{s1}")
    VL.append(None)
    VL.append(f"v_permlane16_swap_b32 v{s1}, v{s2}")
    VL.append(f"v_fma_f32 v{s2}, -v{s1}, v{s1}, v{s2}")
    VL.append(f"v_max_f32 v{s2}, 0, v{s2}")
    VL += ln_finish_l(s1, s2, sr)
    vi = 0
    out_l = [("h", k) for k in range(NPR)] + [("s", i) for i in range(5)]
    for ks in range(20):
        if ks + NPR < 20:
            a(f"ds_read_b128 {V(fB+4*(ks+NPR),4)}, v{fA+3} offset:{L_HN+64*(ks+NPR)}"); out_l.append(("h", ks + NPR))
        need_idx = out_l.index(("h", ks))
        if ks == NPR - 1: need_idx = out_l.index(("s", 4))
        a(f"s_waitcnt lgkmcnt({min(15, len(out_l)-1-need_idx)})")
        a(f"v_mfma_f32_16x16x32_bf16 {V(fZ,4)}, {V(fB+4*ks,4)}, {V(fGU+4*ks,4)}, {V(fZ,4) if ks else 0}")
        if ks >= NPR - 1:
            cnt = 0
            while vi < len(VL) and cnt < 2:
                if VL[vi] is None:
                    vi += 1
                    if cnt: break
                    continue
                a(VL[vi]); vi += 1; cnt += 1
    while vi < len(VL):
        if VL[vi]: a(VL[vi])
        vi += 1
    cyc(2)
    g_, t_ = fZ + 4, fZ + 6
    a(f"v_fma_f32 v{g_}, -v{s1}, v{fZ+1}, v{fZ}")
    a(f"v_mul_f32 v{g_}, v{g_}, v{sr}")
    bf16r(f"v{g_}", f"v{g_}")
    a(f"v_mul_f32 v{t_}, v{g_}, v{g_}")
    c1 = -2.0 * 0.7978845608028654 * LOG2E
    a(f"v_mov_b32 v{t_+1}, {f32(c1)}")
    a(f"v_fmac_f32 v{t_+1}, {f32(c1 * 0.044715)}, v{t_}")
    a(f"v_mul_f32 v{t_}, v{t_+1}, v{g_}")
    a(f"v_exp_f32 v{t_}, v{t_}")
    a(f"v_add_f32 v{t_}, 1.0, v{t_}")
    a(f"v_rcp_f32 v{t_}, v{t_}")
    a(f"v_mul_f32 v{t_}, v{g_}, v{t_}")
    bf16r(f"v{t_}", f"v{t_}")
    a(f"v_mul_f32_dpp v{t_}, v{g_}, v{t_} row_ror:8 {DPPF}")
    a(f"v_cvt_pk_bf16_f32 v{t_}, v{t_}, v{t_}")
    a(f"s_and_b32 exec_lo, s78, 0xff"); a(f"s_and_b32 exec_hi, s79, 0xff")
    a(f"ds_write_b16 v{fA+5}, v{t_} offset:{L_AC}")
    exfull()
    cyc(3)
    a("s_waitcnt lgkmcnt(0)")
    a.label("L_F_b2")
    dbar()
    cyc(4)
    if fst: a("s_waitcnt lgkmcnt(0)")
    for i in range(5): a(f"ds_read_b128 {V(fB+4*i,4)}, v{fAD+i} offset:{L_AC}")
    for i in range(5):
        a(f"s_waitcnt lgkmcnt({4-i})")
        a(f"v_mfma_f32_16x16x32_bf16 {V(fZ,4)}, {V(fD+4*i,4)}, {V(fB+4*i,4)}, {V(fZ,4) if i else 0}")
    exset(sM1)
    a(f"buffer_store_dwordx4 {V(fZ,4)}, v{fA+6}, {S(rWS)}, s98 offen sc1")
    cyc(5); cyc(6)
    a(f"s_cmp_lg_u32 {sFI}, 0"); a("s_cbranch_scc1 L_F_x")
    a(f"s_cmp_lg_u32 {sWAVE}, 4"); a("s_cbranch_scc1 L_F_x")
    exset(1)
    a(f"v_mov_b32 v{fB}, {sTAG}"); a(f"s_mov_b32 {sT0}, {OFF_EP}")
    a(f"buffer_store_dword v{fB}, v{tA+1}, {S(rWS)}, {sT0} offen sc1")
    a.label("L_F_x")
    exfull()
    if fst:
        cyc(7)
        a("s_memrealtime s[32:33]")
        a("s_waitcnt lgkmcnt(0)")
        a("s_lshl_b32 s86, s2, 3"); a(f"s_add_u32 s86, s86, {sWAVE}"); a("s_lshl_b32 s86, s86, 7"); a(f"s_add_u32 s86, s86, {OFF_TS + 0x40000}")
        a(f"s_cmp_ge_u32 {sWAVE}, 4"); a("s_cbranch_scc1 L_F_y")
        exset(1)
        for i in range(9):
            a(f"v_mov_b32 v60, s{16+2*i}"); a(f"v_mov_b32 v61, s{17+2*i}"); a("v_mov_b32 v62, 0")
            a(f"buffer_store_dwordx2 v[60:61], v62, {S(rWS)}, s86 offen offset:{8*i}")
        a("v_mov_b32 v60, s100"); a("v_mov_b32 v61, s101")
        a(f"buffer_store_dwordx2 v[60:61], v62, {S(rWS)}, s86 offen offset:72")
        a("v_mov_b32 v60, s4"); a("v_mov_b32 v61, s5")
        a(f"buffer_store_dwordx2 v[60:61], v62, {S(rWS)}, s86 offen offset:80")
        exfull()
        a.label("L_F_y")
    stamp(10)
    a.label("L_end")
    if dry:
        a(f"s_cmp_eq_u32 {sDRY}, 0"); a("s_cbranch_scc1 L_exit")
        a(f"s_mov_b32 {sDRY}, 0"); a(f"s_mov_b64 {sFULL}, -1"); a("s_mov_b64 exec, -1")
        a("s_waitcnt vmcnt(0) lgkmcnt(0)")
        a("s_branch L_s_tail")
    a.label("L_exit")
    a("s_endpgm")

    hdr = open("sequential_preLN__gqa_block_cached__geglu_ffn__decode.s.ref").read().split("; Override launch")[0]
    return hdr + f"""; @launch grid=(256,1,1) block=(512,1,1) lds={LDS_BYTES}
.amdgcn_target "amdgcn-amd-amdhsa--gfx950"
.text
.globl {NAME}
.p2align 8
.type {NAME},@function
{NAME}:
""" + a.finalize() + f""".section .rodata,"a"
.p2align 6
.amdhsa_kernel {NAME}
  .amdhsa_next_free_vgpr 256
  .amdhsa_next_free_sgpr 102
  .amdhsa_accum_offset 256
  .amdhsa_group_segment_fixed_size 0
  .amdhsa_kernarg_size 96
  .amdhsa_user_sgpr_count 2
  .amdhsa_user_sgpr_kernarg_segment_ptr 1
  .amdhsa_system_sgpr_workgroup_id_x 1
  .amdhsa_float_denorm_mode_32 3
.end_amdhsa_kernel
"""

if __name__ == "__main__":
    kw = eval("dict(%s)" % (sys.argv[2] if len(sys.argv) > 2 else ""))
    open(sys.argv[1], "w").write(gen(**kw))
```

```python
import sys, struct
sys.path.insert(0, "gen")
from asmlib import Asm

NAME = "sequential_preLN__gqa_block_cached__geglu_ffn__decode_kernel"
def f32(x): return "0x%08x" % struct.unpack("<I", struct.pack("<f", x))[0]

SPR = 3
OFF_OP = 0x0
OFF_ST = 0x18000
OFF_YP = 0x19000
OFF_ZP = 0x23000
OFF_QP = 0x48000
OFF_EP = 0x58000
OFF_TS = 0x100000
WS_SIZE = 0x200000
L_Q = 0
L_ST = 256
L_CNT = 320
L_OP = 16384
L_OB = 4352
L_HN = 6912
L_ONE = 9600
L_SP = 11008
L_AC = 13568
L_RM = 14016
L_W = 16384
LDS_BYTES = L_W + 131072
NS = 64 * SPR
R_FIRST = 24
LOG2E = 1.4426950408889634
SPIN = 60000
NG = 6
NSTEP = 86

def gen(NGR=3, DK=4, DV=4, DP=4, DE=4, NEND=0, QAT=28, QSTART=40, QW=0, BUD=24, SIDEAT=66, DPAT=None, strip=0, fewst=False, nosvc=False, defer=True, swap=True, dmaF=31, TRF=2, TRR=24, tsleep=3, skipv=True, kbx=True, noclr=False, noside=False, nob0=False, sv=9, noflag=False, skipclr=False, cpol='sc1', ctr=False, stamps=False, wqpol="nt", wpol="nt", kvpol="nt", dmad=7, dry=True, norole=False, gsleep=2, nodma=False, fst=False, psleep=1, osleep=0, rsleep=1):
    a = Asm()
    R = 16 * NGR
    sWAVE, sROW, sS, sREC, sSI = "s3", "s6", "s8", "s9", "s7"
    pX, pK, pV, pWQ, pWO, pWG, pWU, pWD, pOUT, pDBG, pWS = 16, 18, 20, 22, 24, 28, 30, 32, 34, 36, 38
    rWS, rKV, rA, rB2, rX, rDBG, rOUT = 40, 44, 48, 52, 56, 60, 92
    sLW, sC1280 = "s14", "s99"
    sOFF, sCNT, sT0, sT1, sT2, sT3 = "s64", "s65", "s66", "s67", "s68", "s69"
    sVB = 70
    sM0, sM1, sM2 = "s[72:73]", "s[74:75]", "s[76:77]"
    sFULL = "s[78:79]"
    sFI, sRI, sSP, sDRY, sOFF0, sSTEP, sTAG, sND = "s80", "s81", "s82", "s83", "s10", "s11", "s12", "s13"
    def srd(r, p, size, off=None):
        if off is None:
            a(f"s_mov_b32 s{r}, s{p}"); a(f"s_mov_b32 s{r+1}, s{p+1}")
        else:
            a(f"s_add_u32 s{r}, s{p}, {off}"); a(f"s_addc_u32 s{r+1}, s{p+1}, 0")
        a(f"s_mov_b32 s{r+2}, {size}"); a(f"s_mov_b32 s{r+3}, 0x20000")
    def S(r): return f"s[{r}:{r+3}]"
    def V(r, n=1): return f"v{r}" if n == 1 else f"v[{r}:{r+n-1}]"
    def exset(m): a(f"s_and_b64 exec, {sFULL}, {m}")
    def exfull(): a(f"s_mov_b64 exec, {sFULL}")
    nb = [0]
    def uid():
        nb[0] += 1; return nb[0]
    def dbar():
        n = uid()
        a(f"s_cbranch_execz L_nb{n}"); a("s_barrier"); a.label(f"L_nb{n}")
    def stamp(idx):
        if not stamps: return
        if fewst and idx in (1, 2, 8): return
        if fewst == 2 and idx not in (0, 3, 7): return
        a("s_memrealtime s[84:85]")
        a("s_lshl_b32 s86, s2, 3"); a(f"s_add_u32 s86, s86, {sWAVE}"); a("s_lshl_b32 s86, s86, 7"); a(f"s_add_u32 s86, s86, {OFF_TS + idx*8}")
        a("s_waitcnt lgkmcnt(0)")
        a("s_mov_b64 s[88:89], exec")
        exset(1)
        a("v_mov_b32 v60, s84"); a("v_mov_b32 v61, s85"); a("v_mov_b32 v62, 0")
        a(f"buffer_store_dwordx2 v[60:61], v62, {S(rWS)}, s86 offen")
        a("s_mov_b64 exec, s[88:89]")
    def cyc(i):
        if fst: a(f"s_memtime s[{16+2*i}:{17+2*i}]")
    def bf16r(dst, src):
        a(f"v_cvt_pk_bf16_f32 {dst}, {src}, {src}"); a(f"v_and_b32 {dst}, 0xffff0000, {dst}")
    DPPF = "row_mask:0xf bank_mask:0xf"
    ROWRED = ("quad_perm:[1,0,3,2]", "quad_perm:[2,3,0,1]", "row_half_mirror", "row_mirror")
    def wave_reduce(op, regs, tmp, half=False):
        for mod in ROWRED:
            for r in regs: a(f"{op}_dpp v{r}, v{r}, v{r} {mod} {DPPF}")
        for sw in ("v_permlane16_swap_b32",) + (() if half else ("v_permlane32_swap_b32",)):
            for r, t in zip(regs, tmp): a(f"v_mov_b32 v{t}, v{r}")
            for r, t in zip(regs, tmp): a(f"{sw} v{r}, v{t}")
            for r, t in zip(regs, tmp): a(f"{op} v{r}, v{r}, v{t}")
    def poll(lbl, loads, body, sleep=0):
        a(f"s_mov_b32 {sSP}, {SPIN}")
        if sleep:
            a(f"s_branch {lbl}_e")
        a.label(lbl)
        if sleep:
            a(f"s_sleep {sleep}"); a.label(f"{lbl}_e")
        for l in loads: a(l)
        a(f"s_sub_u32 {sSP}, {sSP}, 1"); a(f"s_cmp_eq_u32 {sSP}, 0"); a(f"s_cselect_b64 {sM2}, 0, -1")
        body()
        a(f"s_and_b64 vcc, vcc, {sM2}")
        a(f"s_cbranch_vccnz {lbl}")
    def ln_finish_l(vmean, vvar, t0):
        L = []
        def b(d): L.append(f"v_cvt_pk_bf16_f32 v{d}, v{d}, v{d}"); L.append(f"v_and_b32 v{d}, 0xffff0000, v{d}")
        b(vvar); L.append(f"v_add_f32 v{vvar}, {f32(1e-5)}, v{vvar}"); b(vvar)
        L.append(f"v_sqrt_f32 v{vvar}, v{vvar}"); b(vmean); b(vvar)
        L.append(f"v_rcp_f32 v{t0}, v{vvar}")
        return L
    def settag(dst, src):
        a(f"v_bfi_b32 v{dst}, v{vFF}, {sTAG}, v{src}")
    sTB = "s60"
    def chktag(regs, t0, t1=None):
        regs = list(regs)
        for r in regs: a(f"v_xor_b32 v{r}, {sTB}, v{r}")
        if len(regs) == 1: t0 = regs[0]
        else:
            a(f"v_or3_b32 v{t0}, v{regs[0]}, v{regs[1]}, v{regs[2]}"); a(f"v_or_b32 v{t0}, v{t0}, v{regs[3]}")
        a(f"v_cmp_ne_u32_sdwa vcc, v{t0}, 0 src0_sel:BYTE_0 src1_sel:DWORD")
    vFF = 63
    def mktag(vreg=None):
        a(f"s_mul_i32 {sTAG}, {sTAG}, 0x9E3779B1"); a(f"s_add_u32 {sTAG}, {sTAG}, 0x7F4A7C15"); a(f"s_and_b32 {sTB}, {sTAG}, 0xff")

    vLANE, vG, vC = 1, 2, 3
    vMASK = 4
    a("s_cmp_ge_u32 s2, 256"); a("s_cbranch_scc1 L_exit")
    a("s_load_dwordx16 s[16:31], s[0:1], 0")
    a("s_load_dwordx8 s[32:39], s[0:1], 64")
    a("v_lshrrev_b32 v2, 6, v0")
    a(f"v_and_b32 v{vLANE}, 63, v0")
    a(f"v_readfirstlane_b32 {sWAVE}, v2")
    a("s_sub_u32 s15, s2, 64")
    a("s_and_b32 s4, s15, 7"); a("s_lshr_b32 s5, s15, 3"); a("s_and_b32 s5, s5, 31")
    a(f"s_mul_i32 {sT0}, s5, 43"); a(f"s_lshr_b32 {sT0}, {sT0}, 7"); a(f"s_mul_i32 {sS}, {sT0}, 3"); a(f"s_sub_u32 {sS}, s5, {sS}")
    a(f"s_lshr_b32 {sROW}, {sT0}, 1"); a(f"s_lshl_b32 {sROW}, {sROW}, 3"); a(f"s_add_u32 {sROW}, {sROW}, s4")
    a(f"s_and_b32 {sT0}, {sT0}, 1"); a(f"s_lshl_b32 {sT0}, {sT0}, 5"); a(f"s_add_u32 {sROW}, {sROW}, {sT0}")
    a(f"s_and_b32 {sROW}, {sROW}, 63")
    a(f"s_lshl_b32 {sT0}, {sROW}, 21"); a(f"s_mul_i32 {sT1}, {sS}, {683*1024}"); a(f"s_add_u32 {sT0}, {sT0}, {sT1}")
    a(f"s_cmp_eq_u32 {sS}, 2"); a(f"s_cselect_b32 {sND}, 682, 683" if False else f"s_cselect_b32 {sND}, 1, 0")
    a(f"s_sub_u32 {sND}, 683, {sND}"); a(f"s_lshl_b32 {sT1}, {sND}, 10")
    a(f"v_lshlrev_b32 v8, 4, v0")
    a(f"s_mov_b32 {sOFF}, 0"); a(f"s_movk_i32 {sSTEP}, 8192")
    a(f"s_mov_b64 {sFULL}, -1"); a(f"s_mov_b32 {sDRY}, 0")
    a(f"v_lshrrev_b32 v{vG}, 4, v{vLANE}"); a(f"v_and_b32 v{vC}, 15, v{vLANE}")
    a("s_waitcnt lgkmcnt(0)")
    srd(rKV, pK, sT1, sT0)
    a(f"s_load_dword {sTAG}, s[{pWS}:{pWS+1}], {OFF_EP}")
    srd(rWS, pWS, WS_SIZE)
    a(f"s_cmp_lt_u32 s2, 64"); a("s_cbranch_scc1 L_service")

    vOFF = 8; vQ = 10; vACC = 14; vBOP = 18; vMX = 26; vL = 27; vT = 28; vFLG = 32; vFW = 34; vSC = 36; vP = 44; vRING = 64
    stamp(0)
    qld = [f"buffer_load_dwordx2 {V(vP,2)}, v{vFLG}, {S(rWS)}, {sT2} offen sc1", f"buffer_load_dwordx2 {V(vP+2,2)}, v{vFLG}, {S(rWS)}, {sT2} offen offset:1024 sc1"]
    def setup():
        a(f"v_lshlrev_b32 v{vT}, 2, v{vLANE}"); a(f"v_cmp_gt_u32 vcc, 16, v{vLANE}"); a(f"v_cndmask_b32 v{vT+2}, 0, -1, vcc")
        a("s_mov_b64 exec, 0x3ffff")
        a(f"ds_write_b32 v{vT}, v{vT+2} offset:{L_ST}")
        a("s_mov_b64 exec, -1")
        srd(rX, pX, 2560); srd(rOUT, pOUT, 2560)
        a(f"s_add_u32 s{sVB}, s{pV}, {sT0}"); a(f"s_addc_u32 s{sVB+1}, s{pV+1}, 0")
        a(f"s_mul_i32 {sREC}, {sROW}, 3"); a(f"s_add_u32 {sREC}, {sREC}, {sS}")
        a("s_waitcnt lgkmcnt(0)")
        a("s_barrier")
        mktag()
        a(f"v_mov_b32 v{vFF}, 0xff")
        a(f"v_and_b32 v9, 1, v{vC}"); a("v_lshlrev_b32 v9, 4, v9"); a("v_mov_b32 v7, 0xffff"); a("v_lshlrev_b32 v9, v9, v7")
        a(f"v_lshrrev_b32 v7, 1, v{vC}")
        for r in range(4):
            a(f"v_cmp_eq_u32 vcc, {r}, v7"); a(f"v_cndmask_b32 v{vMASK+r}, 0, v9, vcc")
        a(f"v_lshlrev_b32 v{vFLG}, 3, v{vLANE}")
        a(f"v_mov_b32 v{vT+1}, 0")
        a(f"s_and_b32 {sT2}, {sROW}, 31"); a(f"s_lshl_b32 {sT2}, {sT2}, 11"); a(f"s_lshr_b32 {sT3}, {sROW}, 5"); a(f"s_lshl_b32 {sT3}, {sT3}, 9")
        a(f"s_add_u32 {sT2}, {sT2}, {sT3}"); a(f"s_add_u32 {sT2}, {sT2}, {OFF_QP}")
        a(f"v_lshlrev_b32 v{vT+2}, 4, v{vLANE}")
        a(f"v_bfe_u32 v{vT+3}, v{vLANE}, 1, 4"); a(f"v_lshlrev_b32 v{vT+3}, 4, v{vT+3}")
        a(f"v_lshrrev_b32 v{vT}, 5, v{vLANE}"); a(f"v_lshl_add_u32 v{vT+3}, v{vT}, 3, v{vT+3}")
        a(f"v_and_b32 v{vT}, 1, v{vLANE}"); a(f"v_lshl_add_u32 v{vT+3}, v{vT}, 2, v{vT+3}")
        a(f"v_lshlrev_b32 v{vT}, 4, v{vC}")
    def q_issue():
        a(f"s_cmp_lg_u32 {sWAVE}, {QW}"); a("s_cbranch_scc1 L_p2")
        for l in qld: a(l)
        a.label("L_p2")
    def q_chk():
        a(f"s_and_b32 {sT3}, {sTAG}, 15")
        for r in range(4): a(f"v_xor_b32 v{vP+r}, {sT3}, v{vP+r}")
        a(f"v_or3_b32 v{vP+4}, v{vP}, v{vP+1}, v{vP+2}"); a(f"v_or_b32 v{vP+4}, v{vP+4}, v{vP+3}"); a(f"v_and_b32 v{vP+4}, 15, v{vP+4}")
        a(f"v_cmp_ne_u32 vcc, 0, v{vP+4}")
    def q_take():
        a(f"s_cmp_lg_u32 {sWAVE}, {QW}"); a("s_cbranch_scc1 L_p3")
        q_chk()
        a("s_cbranch_vccz L_qok")
        def q_body():
            a("s_waitcnt vmcnt(0)"); q_chk()
        poll("L_qpoll", qld, q_body)
        stamp(9)
        a.label("L_qok")
        a(f"v_pk_add_f32 {V(vP,2)}, {V(vP,2)}, {V(vP+2,2)}")
        a(f"v_cvt_pk_bf16_f32 v{vP}, v{vP}, v{vP+1}"); a(f"v_mov_b32 v{vP+1}, 1")
        a(f"ds_write_b32 v{vT+3}, v{vP} offset:{L_Q}")
        a(f"ds_write_b32 v{vT+1}, v{vP+1} offset:{L_CNT+4}")
        a.label("L_p3")
    def q_get():
        stamp(8)
        def b():
            a("s_waitcnt lgkmcnt(0)"); a(f"v_cmp_eq_u32 vcc, 0, v{vP}")
        poll("L_qget", [f"ds_read_b32 v{vP}, v{vT+1} offset:{L_CNT+4}", f"ds_read_b128 {V(vQ,4)}, v{vT} offset:{L_Q}"], b)
        a(f"v_and_b32 v{vT}, 3, v{vC}")
        a(f"v_cmp_eq_u32 {sM0}, 1, v{vT}"); a(f"v_cmp_eq_u32 {sM1}, 2, v{vT}"); a(f"v_cmp_eq_u32 {sM2}, 3, v{vT}")
        a(f"s_mov_b32 {sT3}, {f32(128 ** -0.5)}")
        stamp(1)
    def side():
        def st_l():
            a("s_waitcnt lgkmcnt(0)")
            a(f"v_cmp_eq_u32 vcc, -1, v{vP+1}")
        poll("L_side", [f"ds_read_b64 {V(vP,2)}, v{vFW+1} offset:{L_ST}"], st_l)
        a(f"v_mov_b32 v{vP+2}, v{vP}")
        for mod in ROWRED[:3]: a(f"v_max_f32_dpp v{vP+2}, v{vP+2}, v{vP+2} {mod} {DPPF}")
        a(f"v_sub_f32 v{vFW}, v{vMX}, v{vP+2}"); a(f"v_sub_f32 v{vP}, v{vP}, v{vP+2}")
        a(f"v_mul_f32 v{vFW}, {sT3}, v{vFW}"); a(f"v_mul_f32 v{vP}, {sT3}, v{vP}")
        a(f"v_exp_f32 v{vFW}, v{vFW}"); a(f"v_exp_f32 v{vP}, v{vP}")
        a(f"v_mul_f32 v{vP+4}, v{vP}, v{vP+1}")
        a(f"v_mov_b32 v{vP+3}, {sTAG}"); a(f"v_mov_b32 v{vP+5}, {sTAG}")
        for mod in ROWRED[:3]: a(f"v_add_f32_dpp v{vP+4}, v{vP+4}, v{vP+4} {mod} {DPPF}")
        a(f"s_cmp_lg_u32 {sWAVE}, 0"); a("s_cbranch_scc1 L_side_x")
        a("s_mov_b64 exec, 1")
        a(f"buffer_store_dwordx4 {V(vP+2,4)}, v{vT+1}, {S(rWS)}, {sT1} offen sc1")
        a("s_mov_b64 exec, -1")
        a.label("L_side_x")
    W = []
    def plain(lines, cost=1):
        for l in lines: W.append((cost, None, (lambda k, l=l: a(l))))
    def capture(fn):
        keep = a.lines; a.lines = []; fn(); out = a.lines; a.lines = keep; return out
    W.append((12, None, lambda k: q_get()))
    for n in range(NSTEP):
        j = n & 15
        def kstep(k, j=j):
            a(f"v_dot2_f32_bf16 v{vP+j}, v{k}, v{vQ}, 0")
            for r in range(1, 4): a(f"v_dot2_f32_bf16 v{vP+j}, v{k+r}, v{vQ+r}, v{vP+j}")
        W.append((6, n, kstep))
        if j == 15 or n == NSTEP - 1:
            g = n >> 4
            def red():
                for j in range(8): a(f"v_add_f32_dpp v{vP+j}, v{vP+j}, v{vP+j} row_ror:8 row_mask:0xf bank_mask:0x3")
                if n & 15 >= 8:
                    for j in range(8): a(f"v_add_f32_dpp v{vP+j}, v{vP+j+8}, v{vP+j+8} row_ror:8 row_mask:0xf bank_mask:0xc")
                for j in range(4): a(f"v_add_f32_dpp v{vP+j}, v{vP+j}, v{vP+j} row_shl:4 row_mask:0xf bank_mask:0x5")
                for j in range(4): a(f"v_add_f32_dpp v{vP+j}, v{vP+j+4}, v{vP+j+4} row_shr:4 row_mask:0xf bank_mask:0xa")
                for mod in ("quad_perm:[2,3,0,1]", "quad_perm:[1,0,3,2]"):
                    for j in range(4): a(f"v_add_f32_dpp v{vP+j}, v{vP+j}, v{vP+j} {mod} {DPPF}")
                a(f"v_cndmask_b32 v{vP}, v{vP}, v{vP+1}, {sM0}")
                a(f"v_cndmask_b32 v{vP}, v{vP}, v{vP+2}, {sM1}")
                a(f"v_cndmask_b32 v{vP}, v{vP}, v{vP+3}, {sM2}")
                bf16r(f"v{vP}", f"v{vP}")
                a(f"v_mul_f32 v{vP}, {sT3}, v{vP}")
                bf16r(f"v{vSC+g}", f"v{vP}")
            plain(capture(red))
    W.append((1, None, lambda k: stamp(2)))
    def soft():
        a(f"s_sub_u32 {sT0}, {sND}, {sWAVE}"); a(f"s_sub_u32 {sT0}, {sT0}, {16*(NG-1)*8}")
        a(f"v_lshlrev_b32 v{vT}, 3, v{vC}"); a(f"v_cmp_gt_u32 vcc, {sT0}, v{vT}"); a(f"v_mov_b32 v{vT}, 0xff800000")
        a(f"v_cndmask_b32 v{vSC+NG-1}, v{vT}, v{vSC+NG-1}, vcc")
        a(f"v_max3_f32 v{vMX}, v{vSC}, v{vSC+1}, v{vSC+2}")
        a(f"v_max3_f32 v{vMX}, v{vMX}, v{vSC+3}, v{vSC+4}"); a(f"v_max_f32 v{vMX}, v{vMX}, v{vSC+5}")
        wave_reduce("v_max_f32", [vMX], [vT])
        a(f"s_mov_b32 {sT3}, {f32(LOG2E)}")
        for i in range(NG): a(f"v_sub_f32 v{vSC+i}, v{vSC+i}, v{vMX}")
        for i in range(NG): a(f"v_mul_f32 v{vSC+i}, {sT3}, v{vSC+i}")
        for i in range(NG): a(f"v_exp_f32 v{vSC+i}, v{vSC+i}")
        a(f"v_add_f32 v{vL}, v{vSC}, v{vSC+1}")
        for i in range(2, NG): a(f"v_add_f32 v{vL}, v{vL}, v{vSC+i}")
        for i in range(NG): a(f"v_cvt_pk_bf16_f32 v{vSC+i}, v{vSC+i}, v{vSC+i}")
        wave_reduce("v_add_f32", [vL], [vT])
        a(f"s_lshl_b32 {sT0}, {sWAVE}, 3"); a(f"v_mov_b32 v{vT}, {sT0}")
        a(f"ds_write_b64 v{vT}, {V(vMX,2)} offset:{L_ST}")
        a(f"v_lshlrev_b32 v{vT}, 5, v{vC}"); a(f"v_lshl_add_u32 v{vT}, v{vG}, 4, v{vT}")
        a(f"s_lshl_b32 {sT0}, {sWAVE}, 9"); a(f"v_add_u32 v{vT}, {sT0}, v{vT}")
        a(f"v_mov_b32 v{vT+3}, 1")
        a(f"v_and_b32 v{vFW+1}, 7, v{vLANE}"); a(f"v_lshlrev_b32 v{vFW+1}, 3, v{vFW+1}")
        a(f"s_lshl_b32 {sT0}, {sREC}, 9")
        a(f"s_lshl_b32 {sT1}, {sROW}, 2"); a(f"s_add_u32 {sT1}, {sT1}, {sS}"); a(f"s_lshl_b32 {sT1}, {sT1}, 4"); a(f"s_add_u32 {sT1}, {sT1}, {OFF_ST}")
    plain(capture(soft))
    for n in range(NSTEP):
        if n == SIDEAT and not noside: W.append((BUD, None, lambda k: side()))
        def bop(n):
            bo = vBOP + 4 * (n & 1)
            for r in range(4): a(f"v_and_b32_dpp v{bo+r}, v{vSC+(n>>4)}, v{vMASK+r} row_newbcast:{n&15} {DPPF}")
        if n == 0: W.append((4, None, lambda k: bop(0)))
        def vstep(k, n=n):
            bo = vBOP + 4 * (n & 1)
            a(f"v_mfma_f32_16x16x32_bf16 {V(vACC,4)}, {V(bo,4)}, {V(k,4)}, {V(vACC,4) if n else 0}")
            if n + 1 < NSTEP: bop(n + 1)
        W.append((6, NSTEP + n, vstep))
    if strip >= 1:
        W = [(c, n, (lambda k: None)) if (n is not None) else (c, n, f) for (c, n, f) in W]
    if strip >= 2:
        W = [(c, n, f) for (c, n, f) in W if n is not None]
        W.append((1, None, lambda k: [a(l) for l in capture(soft)]))
    NL = 2 * NSTEP
    free = list(range(R)); slot_of = {}
    issued = 0; known = 0; wi = 0
    def depth(i):
        if DPAT and i < NL - NEND: return DPAT[i % len(DPAT)]
        if i < QSTART: return DP
        if i >= NL - NEND: return DE
        return DK if i < NSTEP else DV
    def run_work(budget, force_need=False):
        nonlocal wi, known
        while wi < len(W) and budget > 0:
            cost, need, fn = W[wi]
            if need is not None:
                if need >= issued: return
                if need >= known:
                    if not force_need: return
                    a(f"s_waitcnt vmcnt({issued-1-need})"); known = need + 1
                fn(vRING + 4 * slot_of[need]); free.append(slot_of.pop(need))
            else:
                fn(None)
            budget -= cost; wi += 1
    while issued < NL:
        d = depth(issued)
        if not free: run_work(1, True)
        while not free: run_work(1, True)
        if issued >= d:
            a(f"s_waitcnt vmcnt({d-1})"); known = max(known, issued - d + 1)
        if issued == NSTEP:
            a(f"s_mov_b32 s{rKV}, s{sVB}"); a(f"s_mov_b32 s{rKV+1}, s{sVB+1}"); a(f"s_mov_b32 {sOFF}, 0")
        sl = free.pop(0); slot_of[issued] = sl
        a(f"buffer_load_dwordx4 {V(vRING+4*sl,4)}, v{vOFF}, {S(rKV)}, {sOFF} offen {kvpol}")
        a(f"s_add_u32 {sOFF}, {sOFF}, {sSTEP}")
        issued += 1
        if issued == DP: setup()
        if issued == QAT and strip < 2: q_issue()
        if issued == QAT + DP + 1 and strip < 2: q_take()
        if issued >= QSTART: run_work(BUD)
    run_work(1 << 30, True)
    assert wi == len(W)
    a(f"v_pk_mul_f32 {V(vACC,2)}, {V(vACC,2)}, {V(vFW,2)} op_sel_hi:[1,0]")
    a(f"v_pk_mul_f32 {V(vACC+2,2)}, {V(vACC+2,2)}, {V(vFW,2)} op_sel_hi:[1,0]")
    a("s_mov_b64 exec, 0xffffffff")
    a(f"ds_write_b128 v{vT}, {V(vACC,4)} offset:{L_OP}")
    a("s_mov_b64 exec, 1")
    a(f"ds_add_rtn_u32 v{vT+3}, v{vT+1}, v{vT+3} offset:{L_CNT}")
    a("s_mov_b64 exec, -1")
    a(f"v_and_b32 v{vBOP}, 0x1ff, v{vT+2}"); a(f"v_lshrrev_b32 v{vBOP+1}, 5, v{vLANE}"); a(f"v_lshl_add_u32 v{vBOP}, v{vBOP+1}, 3, v{vBOP}")
    stamp(3)
    a("s_waitcnt lgkmcnt(0)")
    a(f"v_readfirstlane_b32 {sT2}, v{vT+3}")
    a(f"s_cmp_lg_u32 {sT2}, 7"); a("s_cbranch_scc1 L_stail")
    for w in range(4): a(f"ds_read_b128 {V(vP+4*w,4)}, v{vT+2} offset:{L_OP+1024*w}")
    a("s_waitcnt lgkmcnt(2)")
    a(f"v_pk_add_f32 {V(vP,2)}, {V(vP,2)}, {V(vP+4,2)}"); a(f"v_pk_add_f32 {V(vP+2,2)}, {V(vP+2,2)}, {V(vP+6,2)}")
    a("s_waitcnt lgkmcnt(0)")
    a(f"v_pk_add_f32 {V(vP+8,2)}, {V(vP+8,2)}, {V(vP+12,2)}"); a(f"v_pk_add_f32 {V(vP+10,2)}, {V(vP+10,2)}, {V(vP+14,2)}")
    a(f"v_pk_add_f32 {V(vP,2)}, {V(vP,2)}, {V(vP+8,2)}"); a(f"v_pk_add_f32 {V(vP+2,2)}, {V(vP+2,2)}, {V(vP+10,2)}")
    a(f"v_permlane32_swap_b32 v{vP}, v{vP+2}"); a(f"v_permlane32_swap_b32 v{vP+1}, v{vP+3}")
    a(f"v_pk_add_f32 {V(vP,2)}, {V(vP,2)}, {V(vP+2,2)}")
    settag(vP, vP); settag(vP + 1, vP + 1)
    a(f"buffer_store_dwordx2 {V(vP,2)}, v{vBOP}, {S(rWS)}, {sT0} offen sc1")
    stamp(4)
    a.label("L_stail")
    a(f"s_cmp_ge_u32 s15, {0 if norole else 40}"); a("s_cbranch_scc1 L_exit")
    oA = 8; oY = 16; oZ = 20; oX = 24; oT = 28
    a(f"s_lshr_b32 {sT0}, {sWAVE}, 2"); a(f"s_mul_i32 {sT0}, {sT0}, 1280"); a(f"s_and_b32 {sT1}, {sWAVE}, 3"); a(f"s_lshl_b32 {sT1}, {sT1}, 3")
    a(f"s_add_u32 {sT1}, {sT1}, {sT0}"); a(f"s_lshl_b32 {sT0}, s15, 5"); a(f"s_add_u32 {sT1}, {sT1}, {sT0}")
    a(f"v_lshlrev_b32 v{oA}, 1, v{vG}")
    a(f"buffer_load_ushort v{oX}, v{oA}, {S(rX)}, {sT1} offen")
    a(f"s_lshl_b32 {sT0}, s15, 7"); a(f"s_lshl_b32 {sT2}, {sWAVE}, 4"); a(f"s_add_u32 {sT0}, {sT0}, {sT2}")
    a(f"s_add_u32 {sOFF}, {sT0}, {OFF_YP}"); a(f"s_add_u32 {sCNT}, {sT0}, {OFF_ZP}")
    a(f"v_and_b32 v{oA+1}, 7, v{vLANE}"); a(f"v_mul_u32_u24 v{oA+1}, 5120, v{oA+1}"); a(f"v_lshl_add_u32 v{oA+1}, v{vG}, 2, v{oA+1}")
    a(f"v_mul_u32_u24 v{oA+2}, 5120, v{vLANE}")
    a(f"v_cmp_gt_u32 {sM0}, 27, v{vLANE}")
    a(f"v_cmp_eq_u32 {sM1}, 0, v{vC}")
    for r in range(4): a(f"v_mov_b32 v{oZ+r}, 0")
    def y_body():
        a("s_waitcnt vmcnt(0)")
        chktag([oY], oT)
    poll("L_O_poll1", [f"buffer_load_dword v{oY}, v{oA+1}, {S(rWS)}, {sOFF} offen sc1"], y_body, sleep=gsleep)
    for mod in ROWRED[:3]: a(f"v_add_f32_dpp v{oY}, v{oY}, v{oY} {mod} {DPPF}")
    a(f"v_lshlrev_b32 v{oX}, 16, v{oX}")
    bf16r(f"v{oY}", f"v{oY}")
    a(f"v_add_f32 v{oY}, v{oX}, v{oY}")
    bf16r(f"v{oY}", f"v{oY}")
    stamp(5)
    exset(sM0)
    def z_body():
        a("s_waitcnt vmcnt(0)")
        chktag(range(oZ, oZ + 4), oT, oT + 1)
    poll("L_O_poll2", [f"buffer_load_dwordx4 {V(oZ,4)}, v{oA+2}, {S(rWS)}, {sCNT} offen sc1"], z_body, sleep=osleep)
    exfull()
    stamp(6)
    a(f"v_permlane16_swap_b32 v{oZ}, v{oZ+1}"); a(f"v_permlane16_swap_b32 v{oZ+2}, v{oZ+3}")
    a(f"v_add_f32 v{oZ}, v{oZ}, v{oZ+1}"); a(f"v_add_f32 v{oZ+2}, v{oZ+2}, v{oZ+3}")
    a(f"v_permlane32_swap_b32 v{oZ}, v{oZ+2}")
    a(f"v_add_f32 v{oZ}, v{oZ}, v{oZ+2}")
    for mod in ROWRED: a(f"v_add_f32_dpp v{oZ}, v{oZ}, v{oZ} {mod} {DPPF}")
    bf16r(f"v{oZ}", f"v{oZ}")
    a(f"v_add_f32 v{oZ}, v{oY}, v{oZ}")
    a(f"v_cvt_pk_bf16_f32 v{oZ}, v{oZ}, v{oZ}")
    exset(sM1)
    a(f"buffer_store_short v{oZ}, v{oA}, {S(rOUT)}, {sT1} offen")
    exfull()
    stamp(7)
    a("s_branch L_exit")


    a.label("L_service")
    if nosvc: stamp(0); a("s_branch L_exit")
    hX = 10; hC = 30; hT = 32; hSEL = 40; hACC = 44; hAOP = 48; hW = 64
    stamp(0)
    srd(rX, pX, 2560)
    a(f"v_mov_b32 v{vFF}, 0xff")
    a(f"s_mov_b32 {sSI}, s2"); a(f"s_mov_b32 {sLW}, {L_W}"); a(f"s_movk_i32 {sC1280}, 1280")
    a(f"v_mul_u32_u24 v8, 40, v{vLANE}")
    for i in range(5): a(f"buffer_load_dwordx2 {V(hX+4*i,2)}, v8, {S(rX)}, 0 offen offset:{8*i}")
    a(f"s_and_b32 {sT0}, {sSI}, 1"); a(f"s_mul_i32 {sT0}, {sT0}, 320"); a(f"s_mul_i32 {sT1}, {sWAVE}, 40"); a(f"s_add_u32 {sT0}, {sT0}, {sT1}")
    a(f"v_lshl_add_u32 v9, v{vC}, 2, v{vG}"); a("v_lshlrev_b32 v9, 1, v9")
    a(f"s_lshl_b32 {sT1}, {sT0}, 1")
    a(f"buffer_load_ushort v{hC}, v9, {S(rX)}, {sT1} offen"); a(f"buffer_load_ushort v{hC+1}, v9, {S(rX)}, {sT1} offen offset:1280")
    a(f"s_lshr_b32 {sT1}, {sSI}, 1"); a(f"s_lshl_b32 {sT1}, {sT1}, 8")
    srd(rA, pWQ, 640 * 8192 - 31 * 256, sT1)
    a(f"v_lshlrev_b32 v8, 13, v{vG}"); a(f"v_lshl_add_u32 v8, v{vC}, 4, v8")
    a(f"s_lshl_b32 {sOFF}, {sT0}, 13"); a(f"s_mov_b32 {sSTEP}, 32768")
    for n in range(10):
        a(f"buffer_load_dwordx4 {V(hW+4*n,4)}, v8, {S(rA)}, {sOFF} offen {wqpol}")
        a(f"s_add_u32 {sOFF}, {sOFF}, {sSTEP}")
    a(f"v_lshrrev_b32 v8, 3, v{vC}"); a("v_mul_u32_u24 v8, 0x0202, v8"); a("v_add_u32 v8, 0x0100, v8")
    a("v_or_b32 v9, 0x0c0c0000, v8"); a("v_lshlrev_b32 v8, 16, v8"); a("v_or_b32 v8, 0x0c0c, v8")
    a(f"v_and_b32 v57, 1, v{vC}"); a("v_cmp_eq_u32 vcc, 1, v57"); a("v_cndmask_b32 v8, v9, v8, vcc")
    a(f"v_bfe_u32 v9, v{vC}, 1, 2"); a("v_mov_b32 v57, 0x0c0c0c0c")
    for r in range(4):
        a(f"v_cmp_eq_u32 vcc, {r}, v9"); a(f"v_cndmask_b32 v{hSEL+r}, v57, v8, vcc")
    a("s_waitcnt vmcnt(10) lgkmcnt(0)")
    mktag(56)
    for i in range(5):
        b_ = hX + 4 * i
        a(f"v_and_b32 v{b_+3}, 0xffff0000, v{b_+1}"); a(f"v_lshlrev_b32 v{b_+2}, 16, v{b_+1}")
        a(f"v_and_b32 v{b_+1}, 0xffff0000, v{b_}"); a(f"v_lshlrev_b32 v{b_}, 16, v{b_}")
    a(f"v_pk_add_f32 {V(hT,2)}, {V(hX,2)}, {V(hX+2,2)}")
    for i in range(4, 20, 2): a(f"v_pk_add_f32 {V(hT,2)}, {V(hT,2)}, {V(hX+i,2)}")
    a(f"v_add_f32 v{hT}, v{hT}, v{hT+1}")
    wave_reduce("v_add_f32", [hT], [hT + 1], half=True)
    a(f"v_mul_f32 v{hT}, {f32(1/640)}, v{hT}")
    for i in range(0, 20, 2): a(f"v_pk_add_f32 {V(hX+i,2)}, {V(hX+i,2)}, {V(hT,2)} op_sel_hi:[1,0] neg_lo:[0,1] neg_hi:[0,1]")
    a(f"v_pk_mul_f32 {V(hT+2,2)}, {V(hX,2)}, {V(hX,2)}")
    for i in range(2, 20, 2): a(f"v_pk_fma_f32 {V(hT+2,2)}, {V(hX+i,2)}, {V(hX+i,2)}, {V(hT+2,2)}")
    a(f"v_add_f32 v{hT+2}, v{hT+2}, v{hT+3}")
    wave_reduce("v_add_f32", [hT + 2], [hT + 1], half=True)
    a(f"v_mul_f32 v{hT+2}, {f32(1/640)}, v{hT+2}")
    for l in ln_finish_l(hT, hT + 2, hT + 4): a(l)
    for r in (hT, hT + 2, hT + 4): a(f"v_mov_b32 v{r+1}, v{r}")
    for r in (hT, hT + 2, hT + 4): a(f"v_permlane32_swap_b32 v{r}, v{r+1}")
    for b in range(2): a(f"v_lshlrev_b32 v{hC+b}, 16, v{hC+b}")
    for b in range(2): a(f"v_sub_f32 v{hC+b}, v{hC+b}, v{hT+b}")
    for b in range(2): bf16r(f"v{hC+b}", f"v{hC+b}")
    for b in range(2): a(f"v_mul_f32 v{hT+6+b}, v{hC+b}, v{hT+4+b}")
    for b in range(2): a(f"v_fma_f32 v{hC+b}, -v{hT+6+b}, v{hT+2+b}, v{hC+b}")
    for b in range(2): a(f"v_fma_f32 v{hC+b}, v{hC+b}, v{hT+4+b}, v{hT+6+b}")
    a(f"v_cvt_pk_bf16_f32 v{hC}, v{hC}, v{hC+1}")
    for n in range(10):
        bo = hAOP + 4 * (n & 1)
        a(f"v_mov_b32_dpp v{hC+1}, v{hC} row_newbcast:{n} {DPPF}")
        for r in range(4): a(f"v_perm_b32 v{bo+r}, v{hC+1}, v{hC+1}, v{hSEL+r}")
        a(f"s_waitcnt vmcnt({9-n})")
        a(f"v_mfma_f32_16x16x32_bf16 {V(hACC,4)}, {V(bo,4)}, {V(hW+4*n,4)}, {V(hACC,4) if n else 0}")
    a("v_lshlrev_b32 v8, 4, v0")
    a(f"ds_write_b128 v8, {V(hACC,4)} offset:{L_W}")
    a("s_waitcnt lgkmcnt(0)")
    a("s_barrier")
    a(f"s_cmp_lg_u32 {sWAVE}, 0"); a("s_cbranch_scc1 L_s_nopub")
    for w in range(8): a(f"ds_read_b128 {V(hW+4*w,4)}, v8 offset:{L_W+1024*w}")
    a(f"s_lshl_b32 {sT0}, {sSI}, 10"); a(f"s_add_u32 {sT0}, {sT0}, {OFF_QP}")
    a("s_waitcnt lgkmcnt(0)")
    for st_ in (4, 8, 16):
        for b_ in range(0, 32, 2 * st_):
            for e in (0, 2): a(f"v_pk_add_f32 {V(hW+b_+e,2)}, {V(hW+b_+e,2)}, {V(hW+b_+st_+e,2)}")
    for r in range(4): a(f"v_add_u32 v{hW+r}, 8, v{hW+r}")
    for r in range(4): a(f"v_bfi_b32 v{hW+r}, 15, {sTAG}, v{hW+r}")
    a(f"buffer_store_dwordx4 {V(hW,4)}, v8, {S(rWS)}, {sT0} offen sc1")
    a.label("L_s_nopub")
    stamp(1)
    if norole: a("s_branch L_exit")
    a("s_barrier")
    tF = 192; tO = [132, 136, 140, 144]; tR = [148, 150, 152]
    fGU = 64; fD = 144; fB = 184; fY = 184; fS = 240; fX = 48; fT = 36; fA = 8; fZ = 16; fAD = 42
    tA = 54; tS = 24; tM = 32; tAC = 20
    vPW, vTR, vGW, vGR = 4, 5, 6, 7
    sYP, sOPO, sSTO, sDBL = "s4", "s5", "s6", "s8"
    tF2 = 64; tAC2 = 128
    a("v_lshlrev_b32 v8, 2, v0"); a("v_mov_b32 v9, 0x3f803f80"); a("v_mov_b32 v10, 0")
    a("v_cmp_gt_u32 vcc, 128, v0"); a("s_and_b64 exec, exec, vcc")
    a(f"ds_write_b32 v8, v10 offset:{L_AC}")
    a("s_mov_b64 exec, -1")
    def dma_loop(lbl, srdr, voff, sstep, mstep, n, dd):
        a(f"s_mov_b32 {sCNT}, {n}")
        a.label(lbl)
        if not nodma: a(f"buffer_load_dwordx4 v{voff}, {S(srdr)}, {sOFF} offen {wpol} lds")
        a(f"s_add_u32 {sOFF}, {sOFF}, {sstep}"); a(f"s_add_u32 m0, m0, {mstep}")
        if dd < 31: a(f"s_waitcnt vmcnt({dd})")
        a(f"s_sub_u32 {sCNT}, {sCNT}, 1"); a(f"s_cmp_lg_u32 {sCNT}, 0"); a(f"s_cbranch_scc1 {lbl}")
    a(f"s_sub_u32 {sRI}, {sSI}, 27"); a(f"s_mov_b32 {sFI}, {sSI}")
    a(f"s_lshr_b32 {sT2}, {sWAVE}, 1"); a(f"s_and_b32 {sT2}, {sT2}, 1"); a(f"s_lshl_b32 {sT2}, {sT2}, 3")
    a(f"v_lshlrev_b32 v9, 1, v{vG}"); a(f"v_or_b32 v9, {sT2}, v9"); a(f"v_xor_b32 v9, v9, v{vC}")
    a(f"v_lshlrev_b32 v9, 4, v9"); a(f"v_mul_u32_u24 v{vPW}, 1280, v{vG}"); a(f"v_add_u32 v{vPW}, v{vPW}, v9")
    a(f"v_lshrrev_b32 v12, 2, v{vLANE}"); a("v_and_b32 v12, 7, v12"); a("v_lshlrev_b32 v12, 1, v12")
    a(f"v_bfe_u32 v13, v{vLANE}, 1, 1"); a("v_xor_b32 v12, v12, v13"); a("v_lshlrev_b32 v12, 4, v12")
    a(f"v_and_b32 v13, 1, v{vLANE}"); a("v_lshl_add_u32 v12, v13, 3, v12")
    a(f"v_bfe_u32 v13, v{vLANE}, 2, 2"); a(f"v_lshl_add_u32 v13, v{vG}, 3, v13")
    a(f"v_lshl_add_u32 v{vTR}, v13, 8, v12")
    a(f"s_and_b32 {sT2}, {sWAVE}, 1"); a(f"s_lshl_b32 {sT2}, {sT2}, 1"); a(f"s_and_b32 {sT3}, {sWAVE}, 4"); a(f"s_or_b32 {sT2}, {sT2}, {sT3}")
    a(f"v_and_b32 v9, 1, v{vG}"); a(f"v_or_b32 v9, {sT2}, v9"); a(f"v_and_b32 v10, 7, v{vLANE}"); a("v_xor_b32 v9, v9, v10")
    a(f"v_lshrrev_b32 v8, 3, v{vLANE}"); a("v_mul_u32_u24 v8, 3456, v8"); a(f"v_lshl_add_u32 v{vGW}, v9, 4, v8")
    a(f"v_bfe_u32 v13, v{vLANE}, 3, 2"); a(f"v_bfe_u32 v14, v{vLANE}, 1, 1"); a("v_lshl_add_u32 v13, v14, 2, v13")
    a(f"v_xor_b32 v13, {sWAVE}, v13"); a("v_lshlrev_b32 v13, 4, v13")
    a("v_mul_u32_u24 v14, 20480, v14"); a(f"v_add3_u32 v13, v13, v14, {sLW}")
    a(f"v_and_b32 v14, 1, v{vLANE}"); a("v_lshl_add_u32 v13, v14, 3, v13")
    a(f"v_bfe_u32 v14, v{vLANE}, 2, 2"); a(f"v_lshl_add_u32 v14, v{vG}, 3, v14"); a(f"v_lshl_add_u32 v{vGR}, v14, 7, v13")
    a(f"s_mul_i32 {sT0}, {sWAVE}, 5")
    a(f"v_lshrrev_b32 v{fT}, 3, v{vLANE}"); a(f"v_add_u32 v{fT}, {sT0}, v{fT}"); a(f"v_and_b32 v{fT+1}, 3, v{vLANE}")
    a(f"v_lshl_add_u32 v{fT}, v{fT}, 2, v{fT+1}"); a(f"v_lshlrev_b32 v{fT}, 3, v{fT}")
    a(f"v_bfe_u32 v{fT+1}, v{vLANE}, 2, 1")
    a(f"v_mad_u32_u24 v{fA}, v{fT+1}, {sC1280}, v{fT}")
    a(f"buffer_load_dwordx2 {V(fX,2)}, v{fA}, {S(rX)}, 0 offen")
    a(f"v_mul_u32_u24 v{fA+1}, 1344, v{fT+1}"); a(f"v_add_u32 v{fA+1}, v{fA+1}, v{fT}")
    a(f"v_lshlrev_b32 v{fA+2}, 4, v{vLANE}")
    a(f"s_mul_i32 s90, {sWAVE}, 640"); a(f"s_add_u32 s90, s90, {OFF_YP}")
    for kb in range(1, 8): a(f"s_add_u32 s{90+kb}, s90, {kb*5120}")
    a(f"v_bfe_u32 v{fA+3}, v{vC}, 2, 1"); a(f"v_and_b32 v{fT}, 1, v{vC}")
    a(f"v_mul_u32_u24 v{fA+3}, 1344, v{fA+3}"); a(f"v_lshl_add_u32 v{fA+3}, v{vG}, 4, v{fA+3}")
    a(f"v_lshrrev_b32 v{fT+1}, 3, v{vC}"); a(f"v_mul_u32_u24 v{fT+1}, 640, v{fT+1}"); a(f"v_add_u32 v{fA+3}, v{fA+3}, v{fT+1}")
    a(f"v_and_b32 v{fA+4}, 1, v{vG}"); a(f"v_lshlrev_b32 v{fA+4}, 5, v{fA+4}"); a(f"v_lshrrev_b32 v{fT+1}, 1, v{vG}"); a(f"v_lshl_add_u32 v{fA+4}, v{fT+1}, 4, v{fA+4}")
    a(f"v_add_u32 v{fA+4}, v{fA+4}, v{vC}"); a(f"v_mul_u32_u24 v{fA+4}, 40, v{fA+4}")
    a(f"v_and_b32 v{fA+5}, 1, v{vG}"); a(f"v_lshlrev_b32 v{fA+5}, 7, v{fA+5}"); a(f"v_lshl_add_u32 v{fA+5}, v{vC}, 1, v{fA+5}")
    a(f"s_lshl_b32 {sT0}, {sWAVE}, 4"); a(f"v_add_u32 v{fA+5}, {sT0}, v{fA+5}")
    a(f"v_lshlrev_b32 v{fT}, 7, v{fT}"); a(f"v_lshrrev_b32 v{fT+1}, 1, v{vC}"); a(f"v_mov_b32 v{fT+2}, 320")
    for i in range(5):
        a(f"v_cmp_eq_u32 vcc, {i}, v{fT+1}"); a(f"v_cndmask_b32 v{fAD+i}, v{fT+2}, v{fT}, vcc"); a(f"v_lshl_add_u32 v{fAD+i}, v{vG}, 4, v{fAD+i}")
    a(f"s_mul_i32 s98, {sFI}, 5120"); a(f"s_mul_i32 {sT2}, {sWAVE}, 640"); a(f"s_add_u32 s98, s98, {sT2}"); a(f"s_add_u32 s98, s98, {OFF_ZP}")
    a(f"v_lshlrev_b32 v{fA+6}, 6, v{vC}"); a(f"v_lshl_add_u32 v{fA+6}, v{vG}, 4, v{fA+6}")
    a(f"v_lshlrev_b32 v{tA}, 3, v{vLANE}"); a(f"v_mov_b32 v{tA+1}, 0")
    a(f"s_lshr_b32 {sT2}, {sWAVE}, 2"); a(f"s_mul_i32 {sT2}, {sT2}, 1088"); a(f"s_and_b32 {sT3}, {sWAVE}, 3"); a(f"s_lshl_b32 {sT3}, {sT3}, 8"); a(f"s_add_u32 {sT2}, {sT2}, {sT3}")
    a(f"v_lshl_add_u32 v{tA+2}, v{vLANE}, 2, {sT2}")
    a(f"v_and_b32 v{tA+3}, 1, v{vLANE}"); a(f"v_mul_u32_u24 v{tA+3}, 1088, v{tA+3}"); a(f"v_lshl_add_u32 v{tA+3}, v{vG}, 4, v{tA+3}")
    a(f"v_lshlrev_b32 v{tA+5}, 6, v{vLANE}")
    a(f"s_lshl_b32 {sT2}, 1, {sWAVE}"); a(f"v_mov_b32 v52, {sT2}")
    a(f"s_add_u32 {sT2}, {sRI}, 3")
    a(f"s_mul_i32 {sT0}, {sT2}, 52429"); a(f"s_lshr_b32 {sT0}, {sT0}, 18"); a(f"s_and_b32 {sT0}, {sT0}, 7")
    a(f"s_mul_i32 {sT1}, {sT0}, 5"); a(f"s_sub_u32 {sT1}, {sT2}, {sT1}")
    a(f"s_lshr_b32 {sT2}, {sRI}, 2"); a(f"s_and_b32 {sT3}, {sRI}, 3")
    a(f"s_cmp_lt_u32 {sRI}, 12"); a(f"s_cselect_b32 {sT0}, {sT2}, {sT0}"); a(f"s_cselect_b32 {sT1}, {sT3}, {sT1}"); a(f"s_cselect_b32 {sT3}, {sT3}, 0")
    a(f"s_cmp_eq_u32 {sT3}, 3"); a(f"s_cselect_b32 {sDBL}, 1, 0")
    a(f"s_mul_i32 s9, {sT0}, {(128 if kbx else 512)*1280}"); a(f"s_lshl_b32 {sT2}, {sT1}, 8"); a(f"s_add_u32 s9, s9, {sT2}")
    a(f"s_mul_i32 {sT2}, {sWAVE}, 5120"); a(f"s_add_u32 s9, s9, {sT2}")
    if kbx:
        a(f"s_lshl_b32 {sT2}, {sWAVE}, 3"); a(f"s_add_u32 {sT2}, {sT2}, {sT0}")
    else:
        a(f"s_lshr_b32 {sT2}, {sWAVE}, 2"); a(f"s_lshl_b32 {sT2}, {sT2}, 5"); a(f"s_and_b32 {sT3}, {sWAVE}, 3"); a(f"s_add_u32 {sT2}, {sT2}, {sT3}")
        a(f"s_lshl_b32 {sT3}, {sT0}, 2"); a(f"s_add_u32 {sT2}, {sT2}, {sT3}")
    a(f"s_mul_i32 {sOPO}, {sT2}, 1536")
    a(f"s_lshl_b32 {sSTO}, {sT2}, 6"); a(f"s_add_u32 {sSTO}, {sSTO}, {OFF_ST}")
    a(f"s_mul_i32 {sYP}, {sT0}, 5120"); a(f"s_lshl_b32 {sT1}, {sT1}, 10"); a(f"s_add_u32 {sYP}, {sYP}, {sT1}"); a(f"s_add_u32 {sYP}, {sYP}, {OFF_YP}")
    a(f"s_lshl_b32 {sT1}, {sWAVE}, 7"); a(f"s_add_u32 {sYP}, {sYP}, {sT1}")
    a("s_waitcnt vmcnt(0)")
    a(f"v_and_b32 v{fX+3}, 0xffff0000, v{fX+1}"); a(f"v_lshlrev_b32 v{fX+2}, 16, v{fX+1}")
    a(f"v_and_b32 v{fX+1}, 0xffff0000, v{fX}"); a(f"v_lshlrev_b32 v{fX}, 16, v{fX}")
    def stage_ffn(tag, dd):
        srd(rA, pWG, 640 * 3456); srd(rKV, pWD, 1728 * 1280)
        a(f"s_cmp_ge_u32 {sWAVE}, 4"); a(f"s_cselect_b32 s{rA}, s{pWU}, s{rA}"); a(f"s_cselect_b32 s{rA+1}, s{pWU+1}, s{rA+1}")
        a(f"s_and_b32 {sT0}, {sWAVE}, 3")
        a(f"s_mul_i32 {sOFF}, {sT0}, {8*3456}"); a(f"s_lshl_b32 {sT1}, {sFI}, 7"); a(f"s_add_u32 {sOFF}, {sOFF}, {sT1}")
        a(f"s_lshl_b32 {sT0}, {sT0}, 10"); a(f"s_lshr_b32 {sT1}, {sWAVE}, 2"); a(f"s_mul_i32 {sT1}, {sT1}, 20480"); a(f"s_add_u32 {sT0}, {sT0}, {sT1}")
        a(f"s_mul_i32 {sCNT}, {sFI}, {64*1280}"); a(f"s_mul_i32 {sT1}, {sWAVE}, 5120"); a(f"s_add_u32 {sCNT}, {sCNT}, {sT1}")
        a(f"s_lshl_b32 {sT1}, {sWAVE}, 10")
        def issue(c):
            base = L_W + (c % 3) * 40960
            for u in range(5):
                if c < 4:
                    a(f"s_add_u32 m0, {sT0}, {base + u*4096}")
                    a(f"buffer_load_dwordx4 v{vGW}, {S(rA)}, {sOFF} offen {wpol} lds")
                    a(f"s_add_u32 {sOFF}, {sOFF}, {32*3456}")
                else:
                    a(f"s_add_u32 m0, {sT1}, {base + u*8192}")
                    a(f"buffer_load_dwordx4 v{vPW}, {S(rKV)}, {sCNT} offen {wpol} lds")
                    a(f"s_add_u32 {sCNT}, {sCNT}, {256 if u < 4 else 32*1280 - 1024}")
        for c in range(3): issue(c)
        for i in range(5):
            a(f"s_mul_i32 {sT2}, {sWAVE}, 5"); a(f"s_add_u32 {sT2}, {sT2}, {i}")
            a(f"s_and_b32 {sT3}, {sT2}, 7"); a(f"s_lshl_b32 {sT3}, {sT3}, 5")
            a(f"v_xor_b32 v{fB+i}, {sT3}, v{vTR}")
            a(f"s_lshr_b32 {sT2}, {sT2}, 3"); a(f"s_lshl_b32 {sT2}, {sT2}, 13"); a(f"s_add_u32 {sT2}, {sT2}, {L_W+40960}")
            a(f"v_add_u32 v{fB+i}, {sT2}, v{fB+i}")
        a(f"v_add_u32 v{fB+5}, 81920, v{vGR}")
        for r in range(4): a(f"v_mov_b32 v{fB+8+r}, 0x3f803f80")
        for c in range(6):
            a(f"s_waitcnt vmcnt({5*min(2, 5-c)})")
            a("s_barrier")
            if c < 4:
                for k in range(5):
                    for hh in range(2):
                        sl = c % 3
                        a(f"ds_read_b64_tr_b16 {V(fGU+4*(5*c+k)+2*hh,2)}, v{vGR if sl < 2 else fB+5} offset:{(40960 if sl == 1 else 0)+k*4096+hh*512}")
            else:
                for i in range(5):
                    for hh in range(2):
                        a(f"ds_read_b64_tr_b16 {V(fD+8*i+4*(c-4)+2*hh,2)}, v{fB+i} offset:{(c-4)*40960+hh*1024}")
            if c + 3 < 6:
                a("s_waitcnt lgkmcnt(0)")
                a("s_barrier")
                issue(c + 3)
            if c < 4:
                a("s_waitcnt lgkmcnt(0)")
                for k in range(5):
                    a(f"v_mfma_f32_16x16x32_bf16 {V(fB+12,4)}, {V(fB+8,4)}, {V(fGU+4*(5*c+k),4)}, {V(fB+12,4) if 5*c+k else 0}")
        a(f"v_mov_b32 v47, v{fB+12}")
        a("s_waitcnt lgkmcnt(0)")
    def wo_issue(extra):
        srd(rA, pWO, 4096 * 1280)
        a(f"s_add_u32 {sOFF}, s9, {extra}")
        a(f"s_lshl_b32 {sT1}, {sWAVE}, 10"); a(f"s_add_u32 m0, {sT1}, {L_W}")
        for u in range(16):
            a(f"buffer_load_dwordx4 v{vPW}, {S(rA)}, {sOFF} offen {wpol} lds")
            a(f"s_add_u32 {sOFF}, {sOFF}, {8*5120 + ((1024-128)*1280 if (kbx and u % 4 == 3) else 0)}"); a("s_add_u32 m0, m0, 8192")
    def wo_frags(dst):
        a(f"s_lshl_b32 {sT0}, {sWAVE}, 5")
        a(f"v_xor_b32 v40, {sT0}, v{vTR}"); a(f"v_add_u32 v40, {L_W}, v40"); a("v_add_u32 v41, 65536, v40")
        for ks in range(16):
            for hh in range(2):
                a(f"ds_read_b64_tr_b16 {V(dst+4*ks+2*hh,2)}, v{40+(ks>>3)} offset:{(ks&7)*8192+hh*1024}")
    a(f"s_cmp_eq_u32 {sDBL}, 0"); a("s_cbranch_scc1 L_s_e1")
    wo_issue(256)
    a("s_waitcnt vmcnt(0)")
    a("s_barrier")
    wo_frags(tF2)
    a.label("L_s_e1")
    stamp(2)
    if fst:
        a("s_memtime s[100:101]"); a("s_memrealtime s[70:71]"); a("s_waitcnt lgkmcnt(0)")
    a("s_waitcnt lgkmcnt(0)")
    a("s_barrier")
    if dry:
        a(f"s_mov_b32 {sDRY}, 2"); a(f"s_mov_b64 {sFULL}, 0"); a("s_mov_b64 exec, 0")
    a.label("L_s_tail")
    a(f"s_cmp_ge_u32 {sRI}, 40"); a(f"s_cselect_b32 {sT1}, {64-TRF}, {64-TRR}")
    a(f"s_mov_b32 {sT0}, {OFF_ST}")
    def tr_b():
        a("s_waitcnt vmcnt(0)"); a(f"v_cmp_ne_u32 vcc, {sTAG}, v{tM}")
        a(f"s_bcnt1_i32_b64 {sT2}, vcc"); a(f"s_cmp_gt_u32 {sT2}, {sT1}"); a("s_cselect_b64 vcc, -1, 0")
    a(f"s_cmp_lg_u32 {sWAVE}, 0"); a("s_cbranch_scc1 L_s_trigx")
    poll("L_s_trig", [f"buffer_load_dword v{tM}, v{tA+5}, {S(rWS)}, {sT0} offen offset:4 sc1"], tr_b, sleep=tsleep)
    a.label("L_s_trigx")
    dbar()
    stamp(3)
    a(f"s_cmp_lt_u32 {sRI}, 40"); a("s_cbranch_scc1 L_R")
    a("s_cbranch_execz L_F")
    stage_ffn("d", 31)
    stamp(8)
    a("s_branch L_F")
    a.label("L_R")
    a("s_cbranch_execz L_R_nodma")
    wo_issue(0)
    a.label("L_R_nodma")
    a(f"s_mov_b32 {sT3}, {f32(LOG2E)}")
    a(f"v_cmp_gt_u32 {sM1}, 2, v{vC}")
    tQ = 156
    stl = [f"buffer_load_dwordx4 {V(tQ+4*i,4)}, v{tA+1}, {S(rWS)}, {sSTO} offen offset:{16*i} sc1" for i in range(3)]
    for l in stl: a(l)
    a("s_waitcnt vmcnt(0)")
    dbar()
    wo_frags(tF)
    def st_chk():
        for i in range(3): a(f"v_bitop3_b32 v{tM+i}, v{tQ+4*i+1}, v{tQ+4*i+3}, {sTAG} bitop3:0x7e")
        a(f"v_or3_b32 v{tM}, v{tM}, v{tM+1}, v{tM+2}")
        a(f"v_cmp_ne_u32 vcc, 0, v{tM}")
    st_chk()
    a("s_cbranch_vccz L_R_stok")
    def st_body():
        a("s_waitcnt vmcnt(0)"); st_chk()
    poll("L_R_pst", stl, st_body, sleep=2)
    a.label("L_R_stok")
    a(f"v_max3_f32 v{tM}, v{tQ}, v{tQ+4}, v{tQ+8}")
    for s_ in range(3): a(f"v_sub_f32 v{tS+2*s_}, v{tQ+4*s_}, v{tM}")
    for s_ in range(3): a(f"v_mul_f32 v{tS+2*s_}, {sT3}, v{tS+2*s_}")
    for s_ in range(3): a(f"v_exp_f32 v{tS+2*s_}, v{tS+2*s_}")
    a(f"v_mul_f32 v{tM}, v{tS}, v{tQ+2}")
    for s_ in range(1, 3): a(f"v_fmac_f32 v{tM}, v{tS+2*s_}, v{tQ+4*s_+2}")
    a(f"v_rcp_f32 v{tM}, v{tM}")
    for s_ in range(3): a(f"v_mul_f32 v{tS+2*s_}, v{tS+2*s_}, v{tM}")
    for r in range(4): a(f"v_mov_b32 v{tAC+r}, 0"); a(f"v_mov_b32 v{tAC2+r}, 0")
    stamp(5)
    sMINE, sDONE = sT1, sT2
    a(f"s_mov_b32 {sMINE}, 0"); a(f"s_mov_b32 {sDONE}, -16"); a(f"s_mov_b32 {sSP}, {4*SPIN}")
    a(f"s_cmp_lg_u32 {sDRY}, 0"); a(f"s_cselect_b32 {sSP}, 2, {sSP}")
    a(f"v_mov_b32 v{tM+3}, 0")
    a.label("L_R_loop")
    a(f"s_cmp_lg_u32 {sMINE}, 0"); a("s_cbranch_scc1 L_R_chk")
    if rsleep: a(f"s_sleep {rsleep}")
    for s_ in range(3): a(f"buffer_load_dwordx2 {V(tR[s_],2)}, v{tA}, {S(rWS)}, {sOPO} offen offset:{512*s_} sc1")
    a.label("L_R_chk")
    a(f"ds_read_b32 v{tM+3}, v{tA+1} offset:{L_RM}")
    a(f"s_sub_u32 {sSP}, {sSP}, 1")
    a("s_waitcnt lgkmcnt(0)")
    a(f"v_readfirstlane_b32 {sT3}, v{tM+3}")
    a(f"s_lshr_b32 {sCNT}, {sT3}, 4"); a(f"s_and_b32 {sT3}, {sT3}, {sCNT}")
    a(f"s_cmp_eq_u32 {sSP}, 0"); a(f"s_cselect_b32 {sT3}, 15, {sT3}")
    a(f"s_andn2_b32 {sT3}, {sT3}, {sDONE}")
    a("s_cbranch_scc0 L_R_own")
    a(f"s_or_b32 {sDONE}, {sDONE}, {sT3}")
    for hh in range(4):
        a(f"s_bitcmp1_b32 {sT3}, {hh}"); a(f"s_cbranch_scc0 L_R_h{hh}")
        for k in range(4): a(f"ds_read_b128 {V(tO[k],4)}, v{tA+3} offset:{L_OB+64*(4*hh+k)}")
        for k in range(4):
            a(f"s_waitcnt lgkmcnt({3-k})")
            a(f"v_mfma_f32_16x16x32_bf16 {V(tAC,4)}, {V(tF+4*(4*hh+k),4)}, {V(tO[k],4)}, {V(tAC,4)}")
        a(f"s_cmp_eq_u32 {sDBL}, 0"); a(f"s_cbranch_scc1 L_R_h{hh}")
        for k in range(4):
            a(f"v_mfma_f32_16x16x32_bf16 {V(tAC2,4)}, {V(tF2+4*(4*hh+k),4)}, {V(tO[k],4)}, {V(tAC2,4)}")
        a.label(f"L_R_h{hh}")
    a(f"s_cmp_eq_u32 {sDONE}, -1"); a("s_cbranch_scc1 L_R_fin")
    a.label("L_R_own")
    a(f"s_cmp_lg_u32 {sMINE}, 0"); a("s_cbranch_scc1 L_R_chk")
    for s_ in range(3):
        a(f"s_waitcnt vmcnt({2-s_})")
        a(f"v_xor_b32 v{tR[s_]}, {sTB}, v{tR[s_]}"); a(f"v_xor_b32 v{tR[s_]+1}, {sTB}, v{tR[s_]+1}")
        if s_ == 0:
            a(f"v_pk_mul_f32 {V(tM,2)}, {V(tR[0],2)}, {V(tS,2)} op_sel_hi:[1,0]")
            a(f"v_or_b32 v{tQ}, v{tR[0]}, v{tR[0]+1}")
        else:
            a(f"v_pk_fma_f32 {V(tM,2)}, {V(tR[s_],2)}, {V(tS+2*s_,2)}, {V(tM,2)} op_sel_hi:[1,0,1]")
            a(f"v_or3_b32 v{tQ}, v{tQ}, v{tR[s_]}, v{tR[s_]+1}")
    a(f"v_cmp_ne_u32_sdwa vcc, v{tQ}, 0 src0_sel:BYTE_0 src1_sel:DWORD")
    a(f"v_cvt_pk_bf16_f32 v{tM+2}, v{tM}, v{tM+1}")
    a(f"s_cmp_lt_u32 {sSP}, 64"); a(f"s_cselect_b64 {sM2}, 0, -1"); a(f"s_and_b64 vcc, vcc, {sM2}")
    a("s_cbranch_vccnz L_R_loop")
    a(f"ds_write_b32 v{tA+2}, v{tM+2} offset:{L_OB}")
    exset(1)
    a(f"ds_or_b32 v{tA+1}, v52 offset:{L_RM}")
    exfull()
    a(f"s_mov_b32 {sMINE}, 1")
    stamp(6)
    a("s_branch L_R_chk")
    a.label("L_R_fin")
    exset(sM1)
    a("s_nop 2")
    for r in range(4): settag(tAC + r, tAC + r)
    a(f"buffer_store_dwordx4 {V(tAC,4)}, v{fA+6}, {S(rWS)}, {sYP} offen sc1")
    a(f"s_cmp_eq_u32 {sDBL}, 0"); a("s_cbranch_scc1 L_R_x")
    for r in range(4): settag(tAC2 + r, tAC2 + r)
    a(f"buffer_store_dwordx4 {V(tAC2,4)}, v{fA+6}, {S(rWS)}, {sYP} offen offset:1024 sc1")
    a.label("L_R_x")
    exfull()
    stamp(7)
    a("s_branch L_end")
    a.label("L_F")
    a(f"s_mov_b32 {sT3}, 0x3f803f80")
    a(f"v_cmp_gt_u32 {sM0}, 40, v{vLANE}")
    a(f"v_cmp_gt_u32 {sM1}, 10, v{vC}")
    exset(sM0)
    if stamps: a("s_waitcnt vmcnt(0)")
    if True:
        fAc = fY + 32; sV = sT1
        for r in range(4): a(f"v_mov_b32 v{fAc+r}, 0")
        a(f"s_mov_b32 {sV}, 0"); a(f"s_mov_b32 {sSP}, {SPIN}")
        a.label("L_F_poll")
        if psleep: a(f"s_sleep {psleep}")
        for kb in range(8):
            a(f"s_bitcmp1_b32 {sV}, {kb}"); a(f"s_cbranch_scc1 L_F_i{kb}")
            a(f"buffer_load_dwordx4 {V(fY+4*kb,4)}, v{fA+2}, {S(rWS)}, s{90+kb} offen sc1")
            a.label(f"L_F_i{kb}")
        a(f"s_sub_u32 {sSP}, {sSP}, 1"); a(f"s_cmp_eq_u32 {sSP}, 0"); a(f"s_cselect_b64 {sM2}, 0, -1")
        a("s_waitcnt vmcnt(0)")
        for kb in range(8):
            b_ = fY + 4 * kb
            a.label(f"L_F_c{kb}")
            a(f"s_bitcmp1_b32 {sV}, {kb}"); a(f"s_cbranch_scc1 L_F_c{kb+1}")
            chktag(range(b_, b_ + 4), fAc + 4, fAc + 5)
            a(f"s_and_b64 vcc, vcc, {sM2}")
            a(f"s_cbranch_vccnz L_F_c{kb+1}")
            a(f"v_pk_add_f32 {V(fAc,2)}, {V(fAc,2)}, {V(b_,2)}"); a(f"v_pk_add_f32 {V(fAc+2,2)}, {V(fAc+2,2)}, {V(b_+2,2)}")
            a(f"s_bitset1_b32 {sV}, {kb}")
            a(f"s_cmp_eq_u32 {sV}, 0xff"); a("s_cbranch_scc1 L_F_got")
        a.label("L_F_c8")
        a("s_branch L_F_poll")
        a.label("L_F_got")
        a(f"v_cvt_pk_bf16_f32 v{fY}, v{fAc}, v{fAc+1}"); a(f"v_cvt_pk_bf16_f32 v{fY+2}, v{fAc+2}, v{fAc+3}")
        a(f"v_and_b32 v{fY+1}, 0xffff0000, v{fY}"); a(f"v_lshlrev_b32 v{fY}, 16, v{fY}")
        a(f"v_and_b32 v{fY+3}, 0xffff0000, v{fY+2}"); a(f"v_lshlrev_b32 v{fY+2}, 16, v{fY+2}")
    a(f"v_pk_add_f32 {V(fY,2)}, {V(fY,2)}, {V(fX,2)}"); a(f"v_pk_add_f32 {V(fY+2,2)}, {V(fY+2,2)}, {V(fX+2,2)}")
    a(f"v_cvt_pk_bf16_f32 v{fY}, v{fY}, v{fY+1}"); a(f"v_cvt_pk_bf16_f32 v{fY+1}, v{fY+2}, v{fY+3}")
    a(f"ds_write_b64 v{fA+1}, {V(fY,2)} offset:{L_HN}")
    a(f"v_dot2_f32_bf16 v{fY+2}, v{fY}, {sT3}, 0"); a(f"v_dot2_f32_bf16 v{fY+3}, v{fY}, v{fY}, 0")
    a(f"v_dot2_f32_bf16 v{fY+2}, v{fY+1}, {sT3}, v{fY+2}"); a(f"v_dot2_f32_bf16 v{fY+3}, v{fY+1}, v{fY+1}, v{fY+3}")
    a(f"ds_write_b64 v{fA}, {V(fY+2,2)} offset:{L_SP}")
    exfull()
    if not fst: stamp(9)
    cyc(0)
    a("s_waitcnt lgkmcnt(0)")
    dbar()
    cyc(1)
    if fst: a("s_waitcnt lgkmcnt(0)")
    s1, s2, sr = fT, fT + 1, fT + 2
    for ks in range(3): a(f"ds_read_b128 {V(fB+4*ks,4)}, v{fA+3} offset:{L_HN+64*ks}")
    for i in range(5): a(f"ds_read_b64 {V(fS+2*i,2)}, v{fA+4} offset:{L_SP+8*i}")
    for ks in range(3, 10): a(f"ds_read_b128 {V(fB+4*ks,4)}, v{fA+3} offset:{L_HN+64*ks}")
    VL = []
    VL.append(f"v_pk_add_f32 {V(fS,2)}, {V(fS,2)}, {V(fS+2,2)}"); VL.append(f"v_pk_add_f32 {V(fS+4,2)}, {V(fS+4,2)}, {V(fS+6,2)}")
    VL.append(f"v_pk_add_f32 {V(fS,2)}, {V(fS,2)}, {V(fS+8,2)}"); VL.append(f"v_pk_add_f32 {V(s1,2)}, {V(fS,2)}, {V(fS+4,2)}")
    VL.append(None)
    VL.append(f"v_permlane32_swap_b32 v{s1}, v{s2}")
    VL.append(f"v_add_f32 v{s1}, v{s1}, v{s2}")
    for mod in ROWRED: VL.append(None); VL.append(f"v_add_f32_dpp v{s1}, v{s1}, v{s1} {mod} {DPPF}")
    VL.append(f"v_mul_f32 v{s1}, {f32(1/640)}, v{s1}")
    VL.append(f"v_mov_b32 v{s2}, v{s1}")
    VL.append(None)
    VL.append(f"v_permlane32_swap_b32 v{s1}, v{s2}")
    VL.append(f"v_fma_f32 v{s2}, -v{s1}, v{s1}, v{s2}")
    VL.append(f"v_max_f32 v{s2}, 0, v{s2}")
    VL += ln_finish_l(s1, s2, sr)
    VL.append(f"v_mul_f32 v{s1}, v{s1}, v47")
    vi = 0
    for m in range(20):
        ks = m >> 1; cl = m & 1
        if cl == 0: a(f"s_waitcnt lgkmcnt({14-ks if ks < 3 else 9-ks})")
        a(f"v_mfma_f32_16x16x32_bf16 {V(fZ+4*cl,4)}, {V(fB+4*ks,4)}, {V(fGU+4*(ks+10*cl),4)}, {V(fZ+4*cl,4) if ks else 0}")
        if m >= 6:
            cnt = 0
            while vi < len(VL) and cnt < 2:
                if VL[vi] is None:
                    vi += 1
                    if cnt: break
                    continue
                a(VL[vi]); vi += 1; cnt += 1
    while vi < len(VL):
        if VL[vi]: a(VL[vi])
        vi += 1
    cyc(2)
    g_, t_ = fZ + 8, fZ + 10
    a(f"v_sub_f32 v{g_}, v{fZ}, v{s1}")
    a(f"v_permlane32_swap_b32 v{fZ+4}, v{fZ+2}")
    a(f"v_add_f32 v{g_}, v{g_}, v{fZ+2}")
    a(f"v_mul_f32 v{g_}, v{g_}, v{sr}")
    bf16r(f"v{g_}", f"v{g_}")
    a(f"v_mul_f32 v{t_}, v{g_}, v{g_}")
    c1 = -2.0 * 0.7978845608028654 * LOG2E
    a(f"v_mov_b32 v{t_+1}, {f32(c1)}")
    a(f"v_fmac_f32 v{t_+1}, {f32(c1 * 0.044715)}, v{t_}")
    a(f"v_mul_f32 v{t_}, v{t_+1}, v{g_}")
    a(f"v_exp_f32 v{t_}, v{t_}")
    a(f"v_add_f32 v{t_}, 1.0, v{t_}")
    a(f"v_rcp_f32 v{t_}, v{t_}")
    a(f"v_mul_f32 v{t_}, v{g_}, v{t_}")
    bf16r(f"v{t_}", f"v{t_}")
    a(f"v_mul_f32_dpp v{t_}, v{g_}, v{t_} row_ror:8 {DPPF}")
    a(f"v_cvt_pk_bf16_f32 v{t_}, v{t_}, v{t_}")
    exset("0x00ff00ff")
    a(f"ds_write_b16 v{fA+5}, v{t_} offset:{L_AC}")
    exfull()
    cyc(3)
    a("s_waitcnt lgkmcnt(0)")
    a.label("L_F_b2")
    dbar()
    cyc(4)
    if fst: a("s_waitcnt lgkmcnt(0)")
    for i in range(10): a(f"ds_read_b128 {V(fB+4*i,4)}, v{fAD+(i>>1)} offset:{L_AC+64*(i&1)}")
    for i in range(10):
        a(f"s_waitcnt lgkmcnt({9-i})")
        a(f"v_mfma_f32_16x16x32_bf16 {V(fZ,4)}, {V(fD+4*i,4)}, {V(fB+4*i,4)}, {V(fZ,4) if i else 0}")
    exset(sM1)
    for r in range(4): settag(fZ + r, fZ + r)
    a(f"buffer_store_dwordx4 {V(fZ,4)}, v{fA+6}, {S(rWS)}, s98 offen sc1")
    cyc(5); cyc(6)
    a(f"s_cmp_lg_u32 {sFI}, 0"); a("s_cbranch_scc1 L_F_x")
    a(f"s_cmp_lg_u32 {sWAVE}, 4"); a("s_cbranch_scc1 L_F_x")
    exset(1)
    a(f"v_mov_b32 v{fB}, {sTAG}"); a(f"s_mov_b32 {sT0}, {OFF_EP}")
    a(f"buffer_store_dword v{fB}, v{tA+1}, {S(rWS)}, {sT0} offen sc1")
    a.label("L_F_x")
    exfull()
    if fst:
        cyc(7)
        a("s_memrealtime s[32:33]")
        a("s_waitcnt lgkmcnt(0)")
        a("s_lshl_b32 s86, s2, 3"); a(f"s_add_u32 s86, s86, {sWAVE}"); a("s_lshl_b32 s86, s86, 7"); a(f"s_add_u32 s86, s86, {OFF_TS + 0x40000}")
        exset(1)
        for i in range(9):
            a(f"v_mov_b32 v60, s{16+2*i}"); a(f"v_mov_b32 v61, s{17+2*i}"); a("v_mov_b32 v62, 0")
            a(f"buffer_store_dwordx2 v[60:61], v62, {S(rWS)}, s86 offen offset:{8*i}")
        a("v_mov_b32 v60, s100"); a("v_mov_b32 v61, s101")
        a(f"buffer_store_dwordx2 v[60:61], v62, {S(rWS)}, s86 offen offset:72")
        a("v_mov_b32 v60, s70"); a("v_mov_b32 v61, s71")
        a(f"buffer_store_dwordx2 v[60:61], v62, {S(rWS)}, s86 offen offset:80")
        exfull()
        a.label("L_F_y")
    stamp(10)
    a.label("L_end")
    if dry:
        a(f"s_cmp_eq_u32 {sDRY}, 0"); a("s_cbranch_scc1 L_exit")
        a(f"s_mov_b32 {sDRY}, 0"); a(f"s_mov_b64 {sFULL}, -1"); a("s_mov_b64 exec, -1")
        a("s_waitcnt vmcnt(0) lgkmcnt(0)")
        a("s_branch L_s_tail")
    a.label("L_exit")
    a("s_endpgm")

    hdr = open("sequential_preLN__gqa_block_cached__geglu_ffn__decode.s.ref").read().split("; Override launch")[0]
    return hdr + f"""; @launch grid=(256,1,1) block=(512,1,1) lds={LDS_BYTES}
.amdgcn_target "amdgcn-amd-amdhsa--gfx950"
.text
.globl {NAME}
.p2align 8
.type {NAME},@function
{NAME}:
""" + a.finalize() + f""".section .rodata,"a"
.p2align 6
.amdhsa_kernel {NAME}
  .amdhsa_next_free_vgpr 256
  .amdhsa_next_free_sgpr 102
  .amdhsa_accum_offset 256
  .amdhsa_group_segment_fixed_size 0
  .amdhsa_kernarg_size 96
  .amdhsa_user_sgpr_count 2
  .amdhsa_user_sgpr_kernarg_segment_ptr 1
  .amdhsa_system_sgpr_workgroup_id_x 1
  .amdhsa_float_denorm_mode_32 3
.end_amdhsa_kernel
"""

if __name__ == "__main__":
    kw = eval("dict(%s)" % (sys.argv[2] if len(sys.argv) > 2 else ""))
    open(sys.argv[1], "w").write(gen(**kw))
```

```python
import re

_REG = re.compile(r'^(-|\|)?(abs\()?([vas])(\d+|\[(\d+):(\d+)\])\)?\|?$')

def parse_regs(op):
    op = op.strip()
    if op in ("vcc",): return {("s", "vcc")}
    if op in ("vcc_lo", "vcc_hi"): return {("s", "vcc")}
    if op in ("exec", "exec_lo", "exec_hi"): return {("s", "exec")}
    if op == "m0": return {("s", "m0")}
    m = _REG.match(op)
    if not m: return set()
    k = m.group(3)
    if m.group(5) is not None:
        return {(k, i) for i in range(int(m.group(5)), int(m.group(6)) + 1)}
    return {(k, int(m.group(4)))}

TRANS = ("v_exp_f32", "v_log_f32", "v_rcp_f32", "v_rsq_f32", "v_sqrt_f32", "v_sin_f32", "v_cos_f32", "v_rcp_iflag_f32")

class Ins:
    def __init__(self, text):
        self.text = text
        t = text.split(";")[0].strip()
        self.is_label = t.endswith(":")
        self.is_dir = t.startswith(".") or t == ""
        self.w = set(); self.r = set(); self.srcc = set(); self.srcab = set(); self.sdata = set()
        self.op = ""
        self.states = 1
        if self.is_label or self.is_dir:
            self.states = 0
            return
        parts = t.split(None, 1)
        self.op = op = parts[0]
        rest = parts[1] if len(parts) > 1 else ""
        ops = []; cur = ""; depth = 0
        for ch in rest:
            if ch in "[(": depth += 1
            if ch in "])": depth -= 1
            if ch == "," and depth == 0: ops.append(cur.strip()); cur = ""
            else: cur += ch
        if cur.strip(): ops.append(cur.strip())
        mods = ""
        if ops:
            sp = ops[-1].split(None, 1)
            ops[-1] = sp[0]
            mods = sp[1] if len(sp) > 1 else ""
        self.ops = ops; self.mods = mods
        R = [parse_regs(o) for o in ops]
        self.valu = op.startswith("v_") and not op.startswith(("v_mfma", "v_smfmac"))
        self.mfma = op.startswith(("v_mfma", "v_smfmac"))
        self.dpp = "_dpp" in op or "row_" in mods or "quad_perm" in mods or "wave_" in mods
        self.sdwa = "_sdwa" in op
        self.trans = any(op.startswith(x) for x in TRANS)
        self.dlop = op.startswith("v_dot")
        self.vmem = op.startswith(("buffer_", "global_", "flat_"))
        self.ds = op.startswith("ds_")
        self.salu = op.startswith("s_")
        self.branch = op.startswith(("s_branch", "s_cbranch"))
        self.permlane = op.startswith("v_permlane")
        self.readlane = op.startswith(("v_readlane", "v_readfirstlane", "v_writelane"))
        self.ldsdma = self.vmem and (re.search(r'\blds\b', mods) is not None or "load_lds" in op)
        if op == "s_nop": self.states = int(ops[0], 0) + 1
        allr = set().union(*R) if R else set()
        if self.mfma:
            self.w = R[0]; self.srcab = R[1] | R[2]; self.srcc = R[3]; self.r = self.srcab | self.srcc
            if op.startswith("v_smfmac"):
                self.srcab = R[1] | R[2] | R[3]; self.srcc = R[0]; self.r = self.srcab | self.srcc
            self.passes = 8 if "32x32" in op else 4
        elif self.valu:
            if op.startswith("v_cmpx"):
                self.w = R[0] | {("s", "exec")}; self.r = set().union(*R[1:])
            elif op.startswith("v_cmp"):
                self.w = R[0]; self.r = set().union(*R[1:])
            elif self.permlane or op.startswith("v_swap"):
                self.w = allr; self.r = allr
            elif op.startswith(("v_add_co", "v_sub_co", "v_addc_co", "v_subb_co", "v_subrev_co", "v_div_scale", "v_mad_u64")):
                self.w = R[0] | R[1]; self.r = set().union(*R[2:])
            else:
                self.w = R[0]; self.r = set().union(*R[1:]) if len(R) > 1 else set()
                if op.startswith(("v_fmac", "v_dot2c", "v_dot4c", "v_mac", "v_pk_fmac", "v_writelane")) or self.dpp or self.sdwa:
                    self.r = self.r | R[0]
                if op.startswith("v_cndmask") and len(ops) == 3: self.r = self.r | {("s", "vcc")}
                if op.startswith("v_div_fmas"): self.r = self.r | {("s", "vcc")}
            if self.dpp: self.dppsrc = R[1]
        elif self.vmem:
            if "store" in op or ("atomic" in op) or self.ldsdma:
                self.r = allr
                if "atomic" in op and "sc0" in mods: self.w = R[0]
                if "store" in op and ("x3" in op or "x4" in op):
                    self.sdata = R[0] if op.startswith("buffer") else R[1]
            else:
                self.w = R[0]; self.r = set().union(*R[1:])
            if self.ldsdma: self.r = self.r | {("s", "m0")}
        elif self.ds:
            if op.startswith(("ds_read", "ds_bpermute", "ds_permute", "ds_swizzle")) or "_rtn" in op:
                self.w = R[0]; self.r = set().union(*R[1:])
            else:
                self.r = allr
        elif self.salu:
            if op.startswith(("s_cmp", "s_bitcmp", "s_waitcnt", "s_barrier", "s_nop", "s_sleep", "s_endpgm", "s_setprio", "s_branch", "s_cbranch")):
                self.r = allr
            else:
                self.w = R[0] if R else set(); self.r = set().union(*R[1:]) if len(R) > 1 else set()
                if "saveexec" in op: self.w = self.w | {("s", "exec")}

def isv(rs): return {x for x in rs if x[0] in "va"}
def iss(rs): return {x for x in rs if x[0] == "s"}

def need(p, c):
    n = 0
    if p.is_label or p.is_dir or c.is_label or c.is_dir: return 0
    pw_v = isv(p.w); pw_s = iss(p.w)
    if p.valu:
        if c.valu and c.dpp and (pw_v & c.dppsrc): n = max(n, 2)
        if c.valu and c.dpp and ("s", "exec") in pw_s: n = max(n, 5)
        if c.mfma and (pw_v & c.r): n = max(n, 2 if not p.dlop else 3)
        if c.mfma and ("s", "exec") in pw_s: n = max(n, 4)
        if c.permlane and (pw_v & c.r): n = max(n, 2)
        if c.permlane and ("s", "exec") in pw_s: n = max(n, 4)
        if c.readlane and (pw_v & c.r): n = max(n, 1)
        if c.readlane and ("s", "exec") in pw_s: n = max(n, 4)
        if c.readlane and (pw_s & iss(c.r)): n = max(n, 4)
        if c.valu and (pw_s & iss(c.r)): n = max(n, 2)
        if c.op.startswith("v_div_fmas") and ("s", "vcc") in pw_s: n = max(n, 4)
        if c.vmem and (pw_s & iss(c.r)): n = max(n, 5)
        if p.trans and (c.valu or c.mfma) and not c.trans and (pw_v & c.r): n = max(n, 1)
        if p.trans and (c.vmem or c.ds) and (pw_v & c.r): n = max(n, 1)
        if p.sdwa and c.valu and (pw_v & (c.r | c.w)): n = max(n, 1)
        if p.dlop:
            if pw_v & (c.r | c.w):
                same = c.op == p.op
                if same:
                    ab = parse_regs(c.ops[1]) | parse_regs(c.ops[2])
                    if pw_v & ab: n = max(n, 3)
                else:
                    n = max(n, 3)
        if c.salu and (pw_s & c.r) and not c.branch: n = max(n, 1)
    if p.mfma:
        big = {4: 8, 8: 12}[p.passes]
        if c.mfma:
            if p.w & c.srcab: n = max(n, big)
            if p.w & c.srcc:
                if p.w == c.srcc and p.passes == c.passes: pass
                else: n = max(n, {4: 6, 8: 10}[p.passes])
            elif p.w & c.w: n = max(n, big)
        elif c.valu or c.vmem or c.ds:
            if p.w & (c.r | c.w): n = max(n, big)
        if c.valu and (p.srcc & c.w): n = max(n, {4: 3, 8: 7}[p.passes])
    if p.salu and ("s", "m0") in p.w and (c.ldsdma or "addtid" in c.op): n = max(n, 1)
    if p.sdata and (p.sdata & c.w): n = max(n, 2 if c.valu else 1)
    return n

class Asm:
    def __init__(self):
        self.lines = []
    def __call__(self, s):
        for l in s.split("\n"):
            l = l.strip()
            if l: self.lines.append(l)
    def label(self, name): self.lines.append(name + ":")
    def finalize(self):
        ins = [Ins(l) for l in self.lines]
        WIN = 14
        def check(hist, c):
            d = 0; worst = 0
            for p in reversed(hist):
                k = need(p, c)
                if k > d: worst = max(worst, k - d)
                d += p.states
                if d >= WIN: break
            return worst
        changed = True
        rounds = 0
        while changed:
            changed = False; rounds += 1
            out = []
            for c in ins:
                hist = []
                for p in reversed(out[-40:]):
                    if p.op in ("s_branch", "s_endpgm"): break
                    hist.append(p)
                hist.reverse()
                k = check(hist, c)
                if k:
                    out.append(Ins(f"s_nop {k-1}")); changed = True
                out.append(c)
            ins = out
            labels = {x.text.split(":")[0].strip(): i for i, x in enumerate(ins) if x.is_label}
            add = {}
            for i, b in enumerate(ins):
                if not getattr(b, "branch", False): continue
                tgt = labels[b.ops[0]]
                hist = []
                for p in reversed(ins[max(0, i - 40):i]):
                    if p.op in ("s_branch", "s_endpgm"): break
                    hist.append(p)
                hist.reverse(); hist.append(b)
                d = 0; j = tgt; worst = 0
                h2 = list(hist)
                nh = len(hist)
                while j < len(ins) and d < WIN:
                    c = ins[j]
                    dd = d
                    for p in reversed(hist):
                        k = need(p, c)
                        if k > dd: worst = max(worst, k - dd)
                        dd += p.states
                        if dd >= WIN: break
                    if c.op in ("s_branch", "s_endpgm"): break
                    d += c.states; j += 1
                if worst: add[i] = worst
            if add:
                changed = True
                out = []
                for i, x in enumerate(ins):
                    if i in add: out.append(Ins(f"s_nop {add[i]-1}"))
                    out.append(x)
                ins = out
            assert rounds < 20
        return "\n".join(("" if (x.is_label or x.is_dir) else "    ") + x.text for x in ins) + "\n"
```

```python
import sys, struct
sys.path.insert(0, "gen")
from asmlib import Asm

NAME = "sequential_preLN__gqa_block_cached__geglu_ffn__decode_kernel"
def f32(x): return "0x%08x" % struct.unpack("<I", struct.pack("<f", x))[0]

SPR = 3
OFF_OP = 0x0
OFF_ST = 0x18000
OFF_YP = 0x19000
OFF_ZP = 0x23000
OFF_QP = 0x48000
OFF_EP = 0x58000
OFF_TS = 0x100000
WS_SIZE = 0x200000
L_Q = 0
L_ST = 256
L_CNT = 320
L_OP = 16384
L_OB = 4352
L_HN = 6912
L_XS = 9600
L_SP = 11008
L_AC = 13568
L_RM = 14016
L_W = 16384
LDS_BYTES = L_W + 131072
NS = 64 * SPR
R_FIRST = 24
LOG2E = 1.4426950408889634
SPIN = 400000
NG = 6
NSTEP = 86

def gen(NGR=3, DK=4, DV=4, DP=4, DE=4, NEND=0, QAT=28, QSTART=40, QW=0, BUD=24, SIDEAT=70, DPAT=None, strip=0, fewst=False, nosvc=False, defer=True, swap=True, dmaF=31, TRF=8, TRR=1, tsleep=3, skipv=True, kbx=True, opol='', pf=0, assist=0, idrot=0, early=False, earlyR=False, bulk=False, aspol='', pfpol='nt', pfbar=True, pf64=True, noclr=False, noside=False, nob0=False, sv=9, noflag=False, skipclr=False, cpol='sc1', ctr=False, stamps=False, wqpol="nt", wpol="nt", kvpol="nt", dmad=7, dry=True, norole=False, gsleep=6, nodma=False, fst=False, psleep=1, osleep=0, rsleep=1):
    a = Asm()
    R = 16 * NGR
    sWAVE, sROW, sS, sREC, sSI = "s3", "s6", "s8", "s9", "s7"
    pX, pK, pV, pWQ, pWO, pWG, pWU, pWD, pOUT, pDBG, pWS = 16, 18, 20, 22, 24, 28, 30, 32, 34, 36, 38
    rWS, rKV, rA, rB2, rX, rDBG, rOUT = 40, 44, 48, 52, 56, 60, 92
    sLW, sC1280 = "s14", "s99"
    sOFF, sCNT, sT0, sT1, sT2, sT3 = "s64", "s65", "s66", "s67", "s68", "s69"
    sVB = 70
    sM0, sM1, sM2 = "s[72:73]", "s[74:75]", "s[76:77]"
    sFULL = "s[78:79]"
    sFI, sRI, sSP, sDRY, sOFF0, sSTEP, sTAG, sND = "s80", "s81", "s82", "s83", "s10", "s11", "s12", "s13"
    def srd(r, p, size, off=None):
        if off is None:
            a(f"s_mov_b32 s{r}, s{p}"); a(f"s_mov_b32 s{r+1}, s{p+1}")
        else:
            a(f"s_add_u32 s{r}, s{p}, {off}"); a(f"s_addc_u32 s{r+1}, s{p+1}, 0")
        a(f"s_mov_b32 s{r+2}, {size}"); a(f"s_mov_b32 s{r+3}, 0x20000")
    def S(r): return f"s[{r}:{r+3}]"
    def V(r, n=1): return f"v{r}" if n == 1 else f"v[{r}:{r+n-1}]"
    def exset(m): a(f"s_and_b64 exec, {sFULL}, {m}")
    def exfull(): a(f"s_mov_b64 exec, {sFULL}")
    nb = [0]
    def uid():
        nb[0] += 1; return nb[0]
    def dbar():
        n = uid()
        a(f"s_cbranch_execz L_nb{n}"); a("s_barrier"); a.label(f"L_nb{n}")
    def stamp(idx):
        if not stamps: return
        if fewst and idx in (1, 2, 8): return
        if fewst == 2 and idx not in (0, 3, 7): return
        a("s_memrealtime s[84:85]")
        a("s_lshl_b32 s86, s2, 3"); a(f"s_add_u32 s86, s86, {sWAVE}"); a("s_lshl_b32 s86, s86, 7"); a(f"s_add_u32 s86, s86, {OFF_TS + idx*8}")
        a("s_waitcnt lgkmcnt(0)")
        a("s_mov_b64 s[88:89], exec")
        exset(1)
        a("v_mov_b32 v60, s84"); a("v_mov_b32 v61, s85"); a("v_mov_b32 v62, 0")
        a(f"buffer_store_dwordx2 v[60:61], v62, {S(rWS)}, s86 offen")
        a("s_mov_b64 exec, s[88:89]")
    def cyc(i):
        if fst: a(f"s_memtime s[{16+2*i}:{17+2*i}]")
    def bf16r(dst, src):
        a(f"v_cvt_pk_bf16_f32 {dst}, {src}, {src}"); a(f"v_and_b32 {dst}, 0xffff0000, {dst}")
    DPPF = "row_mask:0xf bank_mask:0xf"
    ROWRED = ("quad_perm:[1,0,3,2]", "quad_perm:[2,3,0,1]", "row_half_mirror", "row_mirror")
    def wave_reduce(op, regs, tmp, half=False):
        for mod in ROWRED:
            for r in regs: a(f"{op}_dpp v{r}, v{r}, v{r} {mod} {DPPF}")
        for sw in ("v_permlane16_swap_b32",) + (() if half else ("v_permlane32_swap_b32",)):
            for r, t in zip(regs, tmp): a(f"v_mov_b32 v{t}, v{r}")
            for r, t in zip(regs, tmp): a(f"{sw} v{r}, v{t}")
            for r, t in zip(regs, tmp): a(f"{op} v{r}, v{r}, v{t}")
    def poll(lbl, loads, body, sleep=0):
        a(f"s_mov_b32 {sSP}, {SPIN}")
        if sleep:
            a(f"s_branch {lbl}_e")
        a.label(lbl)
        if sleep:
            a(f"s_sleep {sleep}"); a.label(f"{lbl}_e")
        for l in loads: a(l)
        a(f"s_sub_u32 {sSP}, {sSP}, 1"); a(f"s_cmp_eq_u32 {sSP}, 0"); a(f"s_cselect_b64 {sM2}, 0, -1")
        body()
        a(f"s_and_b64 vcc, vcc, {sM2}")
        a(f"s_cbranch_vccnz {lbl}")
    def ln_finish_l(vmean, vvar, t0):
        L = []
        def b(d): L.append(f"v_cvt_pk_bf16_f32 v{d}, v{d}, v{d}"); L.append(f"v_and_b32 v{d}, 0xffff0000, v{d}")
        b(vvar); L.append(f"v_add_f32 v{vvar}, {f32(1e-5)}, v{vvar}"); b(vvar)
        L.append(f"v_sqrt_f32 v{vvar}, v{vvar}"); b(vmean); b(vvar)
        L.append(f"v_rcp_f32 v{t0}, v{vvar}")
        return L
    def settag(dst, src):
        a(f"v_bfi_b32 v{dst}, v{vFF}, {sTAG}, v{src}")
    sTB = "s60"
    def chktag(regs, t0, t1=None):
        regs = list(regs)
        for r in regs: a(f"v_xor_b32 v{r}, {sTB}, v{r}")
        if len(regs) == 1: t0 = regs[0]
        else:
            a(f"v_or3_b32 v{t0}, v{regs[0]}, v{regs[1]}, v{regs[2]}"); a(f"v_or_b32 v{t0}, v{t0}, v{regs[3]}")
        a(f"v_cmp_ne_u32_sdwa vcc, v{t0}, 0 src0_sel:BYTE_0 src1_sel:DWORD")
    vFF = 63
    def mktag(vreg=None):
        a(f"s_mul_i32 {sTAG}, {sTAG}, 0x9E3779B1"); a(f"s_add_u32 {sTAG}, {sTAG}, 0x7F4A7C15"); a(f"s_and_b32 {sTB}, {sTAG}, 0xff")

    vLANE, vG, vC = 1, 2, 3
    vMASK = 4
    a("s_cmp_ge_u32 s2, 256"); a("s_cbranch_scc1 L_exit")
    a("s_load_dwordx16 s[16:31], s[0:1], 0")
    if idrot: a(f"s_add_u32 s2, s2, {idrot}"); a("s_and_b32 s2, s2, 255")
    a("s_load_dwordx8 s[32:39], s[0:1], 64")
    a("v_lshrrev_b32 v2, 6, v0")
    a(f"v_and_b32 v{vLANE}, 63, v0")
    a(f"v_readfirstlane_b32 {sWAVE}, v2")
    a("s_sub_u32 s15, s2, 64")
    a("s_and_b32 s4, s15, 7"); a("s_lshr_b32 s5, s15, 3"); a("s_and_b32 s5, s5, 31")
    a(f"s_mul_i32 {sT0}, s5, 43"); a(f"s_lshr_b32 {sT0}, {sT0}, 7"); a(f"s_mul_i32 {sS}, {sT0}, 3"); a(f"s_sub_u32 {sS}, s5, {sS}")
    a(f"s_lshr_b32 {sROW}, {sT0}, 1"); a(f"s_lshl_b32 {sROW}, {sROW}, 3"); a(f"s_add_u32 {sROW}, {sROW}, s4")
    a(f"s_and_b32 {sT0}, {sT0}, 1"); a(f"s_lshl_b32 {sT0}, {sT0}, 5"); a(f"s_add_u32 {sROW}, {sROW}, {sT0}")
    a(f"s_and_b32 {sROW}, {sROW}, 63")
    a(f"s_lshl_b32 {sT0}, {sROW}, 21"); a(f"s_mul_i32 {sT1}, {sS}, {683*1024}"); a(f"s_add_u32 {sT0}, {sT0}, {sT1}")
    a(f"s_cmp_eq_u32 {sS}, 2"); a(f"s_cselect_b32 {sND}, 682, 683" if False else f"s_cselect_b32 {sND}, 1, 0")
    a(f"s_sub_u32 {sND}, 683, {sND}"); a(f"s_lshl_b32 {sT1}, {sND}, 10")
    a(f"v_lshlrev_b32 v8, 4, v0")
    a(f"s_mov_b32 {sOFF}, 0"); a(f"s_movk_i32 {sSTEP}, 8192")
    a(f"s_mov_b64 {sFULL}, -1"); a(f"s_mov_b32 {sDRY}, 0")
    a(f"v_lshrrev_b32 v{vG}, 4, v{vLANE}"); a(f"v_and_b32 v{vC}, 15, v{vLANE}")
    a("s_waitcnt lgkmcnt(0)")
    srd(rKV, pK, sT1, sT0)
    a(f"s_load_dword {sTAG}, s[{pWS}:{pWS+1}], {OFF_EP}")
    srd(rWS, pWS, WS_SIZE)
    a(f"s_cmp_lt_u32 s2, 64"); a("s_cbranch_scc1 L_service")

    vOFF = 8; vQ = 10; vACC = 14; vBOP = 18; vMX = 26; vL = 27; vT = 28; vFLG = 32; vFW = 34; vSC = 36; vP = 44; vRING = 64
    stamp(0)
    qld = [f"buffer_load_dwordx2 {V(vP,2)}, v{vFLG}, {S(rWS)}, {sT2} offen sc1", f"buffer_load_dwordx2 {V(vP+2,2)}, v{vFLG}, {S(rWS)}, {sT2} offen offset:1024 sc1"]
    def setup():
        a(f"v_lshlrev_b32 v{vT}, 2, v{vLANE}"); a(f"v_cmp_gt_u32 vcc, 16, v{vLANE}"); a(f"v_cndmask_b32 v{vT+2}, 0, -1, vcc")
        a("s_mov_b64 exec, 0x3ffff")
        a(f"ds_write_b32 v{vT}, v{vT+2} offset:{L_ST}")
        a("s_mov_b64 exec, -1")
        srd(rX, pX, 2560); srd(rOUT, pOUT, 2560)
        a(f"s_add_u32 s{sVB}, s{pV}, {sT0}"); a(f"s_addc_u32 s{sVB+1}, s{pV+1}, 0")
        a(f"s_mul_i32 {sREC}, {sROW}, 3"); a(f"s_add_u32 {sREC}, {sREC}, {sS}")
        a("s_waitcnt lgkmcnt(0)")
        a("s_barrier")
        mktag()
        a(f"v_mov_b32 v{vFF}, 0xff")
        a(f"v_and_b32 v9, 1, v{vC}"); a("v_lshlrev_b32 v9, 4, v9"); a("v_mov_b32 v7, 0xffff"); a("v_lshlrev_b32 v9, v9, v7")
        a(f"v_lshrrev_b32 v7, 1, v{vC}")
        for r in range(4):
            a(f"v_cmp_eq_u32 vcc, {r}, v7"); a(f"v_cndmask_b32 v{vMASK+r}, 0, v9, vcc")
        a(f"v_lshlrev_b32 v{vFLG}, 3, v{vLANE}")
        a(f"v_mov_b32 v{vT+1}, 0")
        a(f"s_and_b32 {sT2}, {sROW}, 31"); a(f"s_lshl_b32 {sT2}, {sT2}, 11"); a(f"s_lshr_b32 {sT3}, {sROW}, 5"); a(f"s_lshl_b32 {sT3}, {sT3}, 9")
        a(f"s_add_u32 {sT2}, {sT2}, {sT3}"); a(f"s_add_u32 {sT2}, {sT2}, {OFF_QP}")
        a(f"v_lshlrev_b32 v{vT+2}, 4, v{vLANE}")
        a(f"v_bfe_u32 v{vT+3}, v{vLANE}, 1, 4"); a(f"v_lshlrev_b32 v{vT+3}, 4, v{vT+3}")
        a(f"v_lshrrev_b32 v{vT}, 5, v{vLANE}"); a(f"v_lshl_add_u32 v{vT+3}, v{vT}, 3, v{vT+3}")
        a(f"v_and_b32 v{vT}, 1, v{vLANE}"); a(f"v_lshl_add_u32 v{vT+3}, v{vT}, 2, v{vT+3}")
        a(f"v_lshlrev_b32 v{vT}, 4, v{vC}")
    def q_issue():
        a(f"s_cmp_lg_u32 {sWAVE}, {QW}"); a("s_cbranch_scc1 L_p2")
        for l in qld: a(l)
        a.label("L_p2")
    def q_chk():
        a(f"s_and_b32 {sT3}, {sTAG}, 15")
        for r in range(4): a(f"v_xor_b32 v{vP+r}, {sT3}, v{vP+r}")
        a(f"v_or3_b32 v{vP+4}, v{vP}, v{vP+1}, v{vP+2}"); a(f"v_or_b32 v{vP+4}, v{vP+4}, v{vP+3}"); a(f"v_and_b32 v{vP+4}, 15, v{vP+4}")
        a(f"v_cmp_ne_u32 vcc, 0, v{vP+4}")
    def q_take():
        a(f"s_cmp_lg_u32 {sWAVE}, {QW}"); a("s_cbranch_scc1 L_p3")
        q_chk()
        a("s_cbranch_vccz L_qok")
        def q_body():
            a("s_waitcnt vmcnt(0)"); q_chk()
        poll("L_qpoll", qld, q_body)
        stamp(9)
        a.label("L_qok")
        a(f"v_pk_add_f32 {V(vP,2)}, {V(vP,2)}, {V(vP+2,2)}")
        a(f"v_cvt_pk_bf16_f32 v{vP}, v{vP}, v{vP+1}"); a(f"v_mov_b32 v{vP+1}, 1")
        a(f"ds_write_b32 v{vT+3}, v{vP} offset:{L_Q}")
        a(f"ds_write_b32 v{vT+1}, v{vP+1} offset:{L_CNT+4}")
        a.label("L_p3")
    def q_get():
        stamp(8)
        def b():
            a("s_waitcnt lgkmcnt(0)"); a(f"v_cmp_eq_u32 vcc, 0, v{vP}")
        poll("L_qget", [f"ds_read_b32 v{vP}, v{vT+1} offset:{L_CNT+4}", f"ds_read_b128 {V(vQ,4)}, v{vT} offset:{L_Q}"], b)
        a(f"v_and_b32 v{vT}, 3, v{vC}")
        a(f"v_cmp_eq_u32 {sM0}, 1, v{vT}"); a(f"v_cmp_eq_u32 {sM1}, 2, v{vT}"); a(f"v_cmp_eq_u32 {sM2}, 3, v{vT}")
        a(f"s_mov_b32 {sT3}, {f32(128 ** -0.5)}")
        stamp(1)
    def side():
        def st_l():
            a("s_waitcnt lgkmcnt(0)")
            a(f"v_cmp_eq_u32 vcc, -1, v{vP+1}")
        poll("L_side", [f"ds_read_b64 {V(vP,2)}, v{vFW+1} offset:{L_ST}"], st_l)
        a(f"v_mov_b32 v{vP+2}, v{vP}")
        for mod in ROWRED[:3]: a(f"v_max_f32_dpp v{vP+2}, v{vP+2}, v{vP+2} {mod} {DPPF}")
        a(f"v_sub_f32 v{vFW}, v{vMX}, v{vP+2}"); a(f"v_sub_f32 v{vP}, v{vP}, v{vP+2}")
        a(f"v_mul_f32 v{vFW}, {sT3}, v{vFW}"); a(f"v_mul_f32 v{vP}, {sT3}, v{vP}")
        a(f"v_exp_f32 v{vFW}, v{vFW}"); a(f"v_exp_f32 v{vP}, v{vP}")
        a(f"v_mul_f32 v{vP+4}, v{vP}, v{vP+1}")
        a(f"v_mov_b32 v{vP+3}, {sTAG}"); a(f"v_mov_b32 v{vP+5}, {sTAG}")
        for mod in ROWRED[:3]: a(f"v_add_f32_dpp v{vP+4}, v{vP+4}, v{vP+4} {mod} {DPPF}")
        a(f"s_cmp_lg_u32 {sWAVE}, 0"); a("s_cbranch_scc1 L_side_x")
        a("s_mov_b64 exec, 1")
        a(f"buffer_store_dwordx4 {V(vP+2,4)}, v{vT+1}, {S(rWS)}, {sT1} offen sc1")
        a("s_mov_b64 exec, -1")
        a.label("L_side_x")
    W = []
    def plain(lines, cost=1):
        for l in lines: W.append((cost, None, (lambda k, l=l: a(l))))
    def capture(fn):
        keep = a.lines; a.lines = []; fn(); out = a.lines; a.lines = keep; return out
    W.append((12, None, lambda k: q_get()))
    for n in range(NSTEP):
        j = n & 15
        def kstep(k, j=j):
            a(f"v_dot2_f32_bf16 v{vP+j}, v{k}, v{vQ}, 0")
            for r in range(1, 4): a(f"v_dot2_f32_bf16 v{vP+j}, v{k+r}, v{vQ+r}, v{vP+j}")
        W.append((6, n, kstep))
        if j == 15 or n == NSTEP - 1:
            g = n >> 4
            def red():
                for j in range(8): a(f"v_add_f32_dpp v{vP+j}, v{vP+j}, v{vP+j} row_ror:8 row_mask:0xf bank_mask:0x3")
                if n & 15 >= 8:
                    for j in range(8): a(f"v_add_f32_dpp v{vP+j}, v{vP+j+8}, v{vP+j+8} row_ror:8 row_mask:0xf bank_mask:0xc")
                for j in range(4): a(f"v_add_f32_dpp v{vP+j}, v{vP+j}, v{vP+j} row_shl:4 row_mask:0xf bank_mask:0x5")
                for j in range(4): a(f"v_add_f32_dpp v{vP+j}, v{vP+j+4}, v{vP+j+4} row_shr:4 row_mask:0xf bank_mask:0xa")
                for mod in ("quad_perm:[2,3,0,1]", "quad_perm:[1,0,3,2]"):
                    for j in range(4): a(f"v_add_f32_dpp v{vP+j}, v{vP+j}, v{vP+j} {mod} {DPPF}")
                a(f"v_cndmask_b32 v{vP}, v{vP}, v{vP+1}, {sM0}")
                a(f"v_cndmask_b32 v{vP}, v{vP}, v{vP+2}, {sM1}")
                a(f"v_cndmask_b32 v{vP}, v{vP}, v{vP+3}, {sM2}")
                bf16r(f"v{vP}", f"v{vP}")
                a(f"v_mul_f32 v{vP}, {sT3}, v{vP}")
                bf16r(f"v{vSC+g}", f"v{vP}")
            plain(capture(red))
    W.append((1, None, lambda k: stamp(2)))
    def soft():
        a(f"s_sub_u32 {sT0}, {sND}, {sWAVE}"); a(f"s_sub_u32 {sT0}, {sT0}, {16*(NG-1)*8}")
        a(f"v_lshlrev_b32 v{vT}, 3, v{vC}"); a(f"v_cmp_gt_u32 vcc, {sT0}, v{vT}"); a(f"v_mov_b32 v{vT}, 0xff800000")
        a(f"v_cndmask_b32 v{vSC+NG-1}, v{vT}, v{vSC+NG-1}, vcc")
        a(f"v_max3_f32 v{vMX}, v{vSC}, v{vSC+1}, v{vSC+2}")
        a(f"v_max3_f32 v{vMX}, v{vMX}, v{vSC+3}, v{vSC+4}"); a(f"v_max_f32 v{vMX}, v{vMX}, v{vSC+5}")
        wave_reduce("v_max_f32", [vMX], [vT])
        a(f"s_mov_b32 {sT3}, {f32(LOG2E)}")
        for i in range(NG): a(f"v_sub_f32 v{vSC+i}, v{vSC+i}, v{vMX}")
        for i in range(NG): a(f"v_mul_f32 v{vSC+i}, {sT3}, v{vSC+i}")
        for i in range(NG): a(f"v_exp_f32 v{vSC+i}, v{vSC+i}")
        a(f"v_add_f32 v{vL}, v{vSC}, v{vSC+1}")
        for i in range(2, NG): a(f"v_add_f32 v{vL}, v{vL}, v{vSC+i}")
        for i in range(NG): a(f"v_cvt_pk_bf16_f32 v{vSC+i}, v{vSC+i}, v{vSC+i}")
        wave_reduce("v_add_f32", [vL], [vT])
        a(f"s_lshl_b32 {sT0}, {sWAVE}, 3"); a(f"v_mov_b32 v{vT}, {sT0}")
        a(f"ds_write_b64 v{vT}, {V(vMX,2)} offset:{L_ST}")
        a(f"v_lshlrev_b32 v{vT}, 5, v{vC}"); a(f"v_lshl_add_u32 v{vT}, v{vG}, 4, v{vT}")
        a(f"s_lshl_b32 {sT0}, {sWAVE}, 9"); a(f"v_add_u32 v{vT}, {sT0}, v{vT}")
        a(f"v_mov_b32 v{vT+3}, 1")
        a(f"v_and_b32 v{vFW+1}, 7, v{vLANE}"); a(f"v_lshlrev_b32 v{vFW+1}, 3, v{vFW+1}")
        a(f"s_lshl_b32 {sT0}, {sREC}, 9")
        a(f"s_lshl_b32 {sT1}, {sROW}, 2"); a(f"s_add_u32 {sT1}, {sT1}, {sS}"); a(f"s_lshl_b32 {sT1}, {sT1}, 4"); a(f"s_add_u32 {sT1}, {sT1}, {OFF_ST}")
    plain(capture(soft))
    for n in range(NSTEP):
        if n == SIDEAT and not noside: W.append((BUD, None, lambda k: side()))
        def bop(n):
            bo = vBOP + 4 * (n & 1)
            for r in range(4): a(f"v_and_b32_dpp v{bo+r}, v{vSC+(n>>4)}, v{vMASK+r} row_newbcast:{n&15} {DPPF}")
        if n == 0: W.append((4, None, lambda k: bop(0)))
        def vstep(k, n=n):
            bo = vBOP + 4 * (n & 1)
            a(f"v_mfma_f32_16x16x32_bf16 {V(vACC,4)}, {V(bo,4)}, {V(k,4)}, {V(vACC,4) if n else 0}")
            if n + 1 < NSTEP: bop(n + 1)
        W.append((6, NSTEP + n, vstep))
    if strip >= 1:
        W = [(c, n, (lambda k: None)) if (n is not None) else (c, n, f) for (c, n, f) in W]
    if strip >= 2:
        W = [(c, n, f) for (c, n, f) in W if n is not None]
        W.append((1, None, lambda k: [a(l) for l in capture(soft)]))
    NL = 2 * NSTEP
    free = list(range(R)); slot_of = {}
    issued = 0; known = 0; wi = 0
    def depth(i):
        if DPAT and i < NL - NEND: return DPAT[i % len(DPAT)]
        if i < QSTART: return DP
        if i >= NL - NEND: return DE
        return DK if i < NSTEP else DV
    def run_work(budget, force_need=False):
        nonlocal wi, known
        while wi < len(W) and budget > 0:
            cost, need, fn = W[wi]
            if need is not None:
                if need >= issued: return
                if need >= known:
                    if not force_need: return
                    a(f"s_waitcnt vmcnt({issued-1-need})"); known = need + 1
                fn(vRING + 4 * slot_of[need]); free.append(slot_of.pop(need))
            else:
                fn(None)
            budget -= cost; wi += 1
    while issued < NL:
        d = depth(issued)
        if not free: run_work(1, True)
        while not free: run_work(1, True)
        if issued >= d:
            a(f"s_waitcnt vmcnt({d-1})"); known = max(known, issued - d + 1)
        if issued == NSTEP:
            a(f"s_mov_b32 s{rKV}, s{sVB}"); a(f"s_mov_b32 s{rKV+1}, s{sVB+1}"); a(f"s_mov_b32 {sOFF}, 0")
        sl = free.pop(0); slot_of[issued] = sl
        a(f"buffer_load_dwordx4 {V(vRING+4*sl,4)}, v{vOFF}, {S(rKV)}, {sOFF} offen {kvpol}")
        a(f"s_add_u32 {sOFF}, {sOFF}, {sSTEP}")
        issued += 1
        if issued == DP: setup()
        if issued == QAT and strip < 2: q_issue()
        if issued == QAT + DP + 1 and strip < 2: q_take()
        if issued >= QSTART: run_work(BUD)
    run_work(1 << 30, True)
    assert wi == len(W)
    a(f"v_pk_mul_f32 {V(vACC,2)}, {V(vACC,2)}, {V(vFW,2)} op_sel_hi:[1,0]")
    a(f"v_pk_mul_f32 {V(vACC+2,2)}, {V(vACC+2,2)}, {V(vFW,2)} op_sel_hi:[1,0]")
    a("s_mov_b64 exec, 0xffffffff")
    a(f"ds_write_b128 v{vT}, {V(vACC,4)} offset:{L_OP}")
    a("s_mov_b64 exec, 1")
    a(f"ds_add_rtn_u32 v{vT+3}, v{vT+1}, v{vT+3} offset:{L_CNT}")
    a("s_mov_b64 exec, -1")
    a(f"v_and_b32 v{vBOP}, 0x1ff, v{vT+2}"); a(f"v_lshrrev_b32 v{vBOP+1}, 5, v{vLANE}"); a(f"v_lshl_add_u32 v{vBOP}, v{vBOP+1}, 3, v{vBOP}")
    stamp(3)
    a("s_waitcnt lgkmcnt(0)")
    a(f"v_readfirstlane_b32 {sT2}, v{vT+3}")
    a(f"s_cmp_lg_u32 {sT2}, 7"); a("s_cbranch_scc1 L_stail")
    for w in range(4): a(f"ds_read_b128 {V(vP+4*w,4)}, v{vT+2} offset:{L_OP+1024*w}")
    a("s_waitcnt lgkmcnt(2)")
    a(f"v_pk_add_f32 {V(vP,2)}, {V(vP,2)}, {V(vP+4,2)}"); a(f"v_pk_add_f32 {V(vP+2,2)}, {V(vP+2,2)}, {V(vP+6,2)}")
    a("s_waitcnt lgkmcnt(0)")
    a(f"v_pk_add_f32 {V(vP+8,2)}, {V(vP+8,2)}, {V(vP+12,2)}"); a(f"v_pk_add_f32 {V(vP+10,2)}, {V(vP+10,2)}, {V(vP+14,2)}")
    a(f"v_pk_add_f32 {V(vP,2)}, {V(vP,2)}, {V(vP+8,2)}"); a(f"v_pk_add_f32 {V(vP+2,2)}, {V(vP+2,2)}, {V(vP+10,2)}")
    a(f"v_permlane32_swap_b32 v{vP}, v{vP+2}"); a(f"v_permlane32_swap_b32 v{vP+1}, v{vP+3}")
    a(f"v_pk_add_f32 {V(vP,2)}, {V(vP,2)}, {V(vP+2,2)}")
    settag(vP, vP); settag(vP + 1, vP + 1)
    a(f"buffer_store_dwordx2 {V(vP,2)}, v{vBOP}, {S(rWS)}, {sT0} offen sc1")
    stamp(4)
    a.label("L_stail")
    a(f"s_cmp_ge_u32 s15, {0 if norole else 40}"); a("s_cbranch_scc1 L_exit")
    oA = 8; oY = 16; oZ = 20; oX = 24; oT = 28
    a(f"s_lshl_b32 {sT1}, s15, 5"); a(f"s_lshl_b32 {sT0}, {sWAVE}, 2"); a(f"s_add_u32 {sT1}, {sT1}, {sT0}")
    a(f"v_and_b32 v{oT}, 1, v{vG}"); a(f"v_and_b32 v{oT+1}, 2, v{vG}")
    a(f"v_mul_u32_u24 v{oA}, 1280, v{oT}"); a(f"v_add_u32 v{oA}, v{oA}, v{oT+1}")
    a(f"buffer_load_ushort v{oX}, v{oA}, {S(rX)}, {sT1} offen")
    a(f"s_lshl_b32 {sT0}, s15, 7"); a(f"s_lshl_b32 {sT2}, {sWAVE}, 3"); a(f"s_add_u32 {sOFF}, {sT0}, {sT2}"); a(f"s_add_u32 {sCNT}, {sOFF}, {sT2}")
    a(f"s_add_u32 {sOFF}, {sOFF}, {OFF_YP}"); a(f"s_add_u32 {sCNT}, {sCNT}, {OFF_ZP}")
    a(f"v_and_b32 v{oA+1}, 3, v{vLANE}"); a(f"v_mul_u32_u24 v{oA+1}, 5120, v{oA+1}")
    a(f"v_lshl_add_u32 v{oA+1}, v{oT}, 6, v{oA+1}"); a(f"v_lshl_add_u32 v{oA+1}, v{oT+1}, 1, v{oA+1}")
    a(f"v_mul_u32_u24 v{oA+2}, 5120, v{vLANE}")
    a(f"v_cmp_gt_u32 {sM0}, 27, v{vLANE}")
    a(f"v_cmp_eq_u32 {sM1}, 0, v{vC}")
    for r in range(4): a(f"v_mov_b32 v{oZ+r}, 0")
    def y_body():
        a("s_waitcnt vmcnt(0)")
        chktag([oY], oT)
    poll("L_O_poll1", [f"buffer_load_dword v{oY}, v{oA+1}, {S(rWS)}, {sOFF} offen sc1"], y_body, sleep=gsleep)
    for mod in ROWRED[:2]: a(f"v_add_f32_dpp v{oY}, v{oY}, v{oY} {mod} {DPPF}")
    a(f"v_lshlrev_b32 v{oX}, 16, v{oX}")
    bf16r(f"v{oY}", f"v{oY}")
    a(f"v_add_f32 v{oY}, v{oX}, v{oY}")
    bf16r(f"v{oY}", f"v{oY}")
    stamp(5)
    exset(sM0)
    def z_body():
        a("s_waitcnt vmcnt(0)")
        chktag(range(oZ, oZ + 4), oT, oT + 1)
    poll("L_O_poll2", [f"buffer_load_dwordx4 {V(oZ,4)}, v{oA+2}, {S(rWS)}, {sCNT} offen sc1"], z_body, sleep=osleep)
    exfull()
    stamp(6)
    a(f"v_permlane16_swap_b32 v{oZ}, v{oZ+1}"); a(f"v_permlane16_swap_b32 v{oZ+2}, v{oZ+3}")
    a(f"v_add_f32 v{oZ}, v{oZ}, v{oZ+1}"); a(f"v_add_f32 v{oZ+2}, v{oZ+2}, v{oZ+3}")
    a(f"v_permlane32_swap_b32 v{oZ}, v{oZ+2}")
    a(f"v_add_f32 v{oZ}, v{oZ}, v{oZ+2}")
    for mod in ROWRED: a(f"v_add_f32_dpp v{oZ}, v{oZ}, v{oZ} {mod} {DPPF}")
    bf16r(f"v{oZ}", f"v{oZ}")
    a(f"v_add_f32 v{oZ}, v{oY}, v{oZ}")
    a(f"v_cvt_pk_bf16_f32 v{oZ}, v{oZ}, v{oZ}")
    exset(sM1)
    a(f"buffer_store_short v{oZ}, v{oA}, {S(rOUT)}, {sT1} offen {opol}")
    exfull()
    stamp(7)
    a("s_branch L_exit")


    a.label("L_service")
    if nosvc: stamp(0); a("s_branch L_exit")
    hX = 10; hC = 30; hT = 32; hSEL = 40; hACC = 44; hAOP = 48; hW = 64
    stamp(0)
    srd(rX, pX, 2560)
    a(f"v_mov_b32 v{vFF}, 0xff")
    a(f"s_mov_b32 {sSI}, s2"); a(f"s_mov_b32 {sLW}, {L_W}"); a(f"s_movk_i32 {sC1280}, 1280")
    a(f"v_mul_u32_u24 v8, 40, v{vLANE}")
    for i in range(5): a(f"buffer_load_dwordx2 {V(hX+4*i,2)}, v8, {S(rX)}, 0 offen offset:{8*i}")
    a(f"s_and_b32 {sT0}, {sSI}, 1"); a(f"s_mul_i32 {sT0}, {sT0}, 320"); a(f"s_mul_i32 {sT1}, {sWAVE}, 40"); a(f"s_add_u32 {sT0}, {sT0}, {sT1}")
    a(f"v_lshl_add_u32 v9, v{vC}, 2, v{vG}"); a("v_lshlrev_b32 v9, 1, v9")
    a(f"s_lshl_b32 {sT1}, {sT0}, 1")
    a(f"buffer_load_ushort v{hC}, v9, {S(rX)}, {sT1} offen"); a(f"buffer_load_ushort v{hC+1}, v9, {S(rX)}, {sT1} offen offset:1280")
    a(f"s_lshr_b32 {sT1}, {sSI}, 1"); a(f"s_lshl_b32 {sT1}, {sT1}, 8")
    srd(rA, pWQ, 640 * 8192 - 31 * 256, sT1)
    a(f"v_lshlrev_b32 v8, 13, v{vG}"); a(f"v_lshl_add_u32 v8, v{vC}, 4, v8")
    a(f"s_lshl_b32 {sOFF}, {sT0}, 13"); a(f"s_mov_b32 {sSTEP}, 32768")
    for n in range(10):
        a(f"buffer_load_dwordx4 {V(hW+4*n,4)}, v8, {S(rA)}, {sOFF} offen {wqpol}")
        a(f"s_add_u32 {sOFF}, {sOFF}, {sSTEP}")
    a(f"v_lshrrev_b32 v8, 3, v{vC}"); a("v_mul_u32_u24 v8, 0x0202, v8"); a("v_add_u32 v8, 0x0100, v8")
    a("v_or_b32 v9, 0x0c0c0000, v8"); a("v_lshlrev_b32 v8, 16, v8"); a("v_or_b32 v8, 0x0c0c, v8")
    a(f"v_and_b32 v57, 1, v{vC}"); a("v_cmp_eq_u32 vcc, 1, v57"); a("v_cndmask_b32 v8, v9, v8, vcc")
    a(f"v_bfe_u32 v9, v{vC}, 1, 2"); a("v_mov_b32 v57, 0x0c0c0c0c")
    for r in range(4):
        a(f"v_cmp_eq_u32 vcc, {r}, v9"); a(f"v_cndmask_b32 v{hSEL+r}, v57, v8, vcc")
    a("s_waitcnt vmcnt(10) lgkmcnt(0)")
    mktag(56)
    for i in range(5):
        b_ = hX + 4 * i
        a(f"v_and_b32 v{b_+3}, 0xffff0000, v{b_+1}"); a(f"v_lshlrev_b32 v{b_+2}, 16, v{b_+1}")
        a(f"v_and_b32 v{b_+1}, 0xffff0000, v{b_}"); a(f"v_lshlrev_b32 v{b_}, 16, v{b_}")
    a(f"v_pk_add_f32 {V(hT,2)}, {V(hX,2)}, {V(hX+2,2)}")
    for i in range(4, 20, 2): a(f"v_pk_add_f32 {V(hT,2)}, {V(hT,2)}, {V(hX+i,2)}")
    a(f"v_add_f32 v{hT}, v{hT}, v{hT+1}")
    wave_reduce("v_add_f32", [hT], [hT + 1], half=True)
    a(f"v_mul_f32 v{hT}, {f32(1/640)}, v{hT}")
    for i in range(0, 20, 2): a(f"v_pk_add_f32 {V(hX+i,2)}, {V(hX+i,2)}, {V(hT,2)} op_sel_hi:[1,0] neg_lo:[0,1] neg_hi:[0,1]")
    a(f"v_pk_mul_f32 {V(hT+2,2)}, {V(hX,2)}, {V(hX,2)}")
    for i in range(2, 20, 2): a(f"v_pk_fma_f32 {V(hT+2,2)}, {V(hX+i,2)}, {V(hX+i,2)}, {V(hT+2,2)}")
    a(f"v_add_f32 v{hT+2}, v{hT+2}, v{hT+3}")
    wave_reduce("v_add_f32", [hT + 2], [hT + 1], half=True)
    a(f"v_mul_f32 v{hT+2}, {f32(1/640)}, v{hT+2}")
    for l in ln_finish_l(hT, hT + 2, hT + 4): a(l)
    for r in (hT, hT + 2, hT + 4): a(f"v_mov_b32 v{r+1}, v{r}")
    for r in (hT, hT + 2, hT + 4): a(f"v_permlane32_swap_b32 v{r}, v{r+1}")
    for b in range(2): a(f"v_lshlrev_b32 v{hC+b}, 16, v{hC+b}")
    for b in range(2): a(f"v_sub_f32 v{hC+b}, v{hC+b}, v{hT+b}")
    for b in range(2): bf16r(f"v{hC+b}", f"v{hC+b}")
    for b in range(2): a(f"v_mul_f32 v{hT+6+b}, v{hC+b}, v{hT+4+b}")
    for b in range(2): a(f"v_fma_f32 v{hC+b}, -v{hT+6+b}, v{hT+2+b}, v{hC+b}")
    for b in range(2): a(f"v_fma_f32 v{hC+b}, v{hC+b}, v{hT+4+b}, v{hT+6+b}")
    a(f"v_cvt_pk_bf16_f32 v{hC}, v{hC}, v{hC+1}")
    for n in range(10):
        bo = hAOP + 4 * (n & 1)
        a(f"v_mov_b32_dpp v{hC+1}, v{hC} row_newbcast:{n} {DPPF}")
        for r in range(4): a(f"v_perm_b32 v{bo+r}, v{hC+1}, v{hC+1}, v{hSEL+r}")
        a(f"s_waitcnt vmcnt({9-n})")
        a(f"v_mfma_f32_16x16x32_bf16 {V(hACC,4)}, {V(bo,4)}, {V(hW+4*n,4)}, {V(hACC,4) if n else 0}")
    a("v_lshlrev_b32 v8, 4, v0")
    a(f"ds_write_b128 v8, {V(hACC,4)} offset:{L_W}")
    a("s_waitcnt lgkmcnt(0)")
    a("s_barrier")
    a(f"s_cmp_lg_u32 {sWAVE}, 0"); a("s_cbranch_scc1 L_s_nopub")
    for w in range(8): a(f"ds_read_b128 {V(hW+4*w,4)}, v8 offset:{L_W+1024*w}")
    a(f"s_lshl_b32 {sT0}, {sSI}, 10"); a(f"s_add_u32 {sT0}, {sT0}, {OFF_QP}")
    a("s_waitcnt lgkmcnt(0)")
    for st_ in (4, 8, 16):
        for b_ in range(0, 32, 2 * st_):
            for e in (0, 2): a(f"v_pk_add_f32 {V(hW+b_+e,2)}, {V(hW+b_+e,2)}, {V(hW+b_+st_+e,2)}")
    for r in range(4): a(f"v_add_u32 v{hW+r}, 8, v{hW+r}")
    for r in range(4): a(f"v_bfi_b32 v{hW+r}, 15, {sTAG}, v{hW+r}")
    a(f"buffer_store_dwordx4 {V(hW,4)}, v8, {S(rWS)}, {sT0} offen sc1")
    a.label("L_s_nopub")
    stamp(1)
    if norole: a("s_branch L_exit")
    a("s_barrier")
    tF = 192; tO = [132, 136, 140, 144]; tR = [148, 152, 184]
    fGU = 64; fD = 144; fB = 184; fY = 184; fS = 240; fX = 48; fT = 36; fA = 8; fZ = 16; fAD = 42
    tA = 54; tS = 24; tM = 32; tAC = 20
    vPW, vTR, vGW, vGR = 4, 5, 6, 7
    sYP, sOPO, sSTO, sDBL, sSH = "s4", "s5", "s6", "s8", "s61"
    tF2 = 64; tAC2 = 128
    a("v_lshlrev_b32 v8, 2, v0"); a("v_mov_b32 v9, 0x3f803f80"); a("v_mov_b32 v10, 0")
    a(f"ds_write_b32 v8, v10 offset:{L_SP}")
    a("v_mov_b32 v9, -1"); a("v_cmp_gt_u32 vcc, 256, v0"); a("s_and_b64 exec, exec, vcc")
    a(f"ds_write_b32 v8, v9 offset:{L_XS}")
    a("v_cmp_gt_u32 vcc, 128, v0"); a("s_and_b64 exec, exec, vcc")
    a(f"ds_write_b32 v8, v10 offset:{L_AC}")
    a("s_mov_b64 exec, -1")
    def dma_loop(lbl, srdr, voff, sstep, mstep, n, dd):
        a(f"s_mov_b32 {sCNT}, {n}")
        a.label(lbl)
        if not nodma: a(f"buffer_load_dwordx4 v{voff}, {S(srdr)}, {sOFF} offen {wpol} lds")
        a(f"s_add_u32 {sOFF}, {sOFF}, {sstep}"); a(f"s_add_u32 m0, m0, {mstep}")
        if dd < 31: a(f"s_waitcnt vmcnt({dd})")
        a(f"s_sub_u32 {sCNT}, {sCNT}, 1"); a(f"s_cmp_lg_u32 {sCNT}, 0"); a(f"s_cbranch_scc1 {lbl}")
    a(f"s_sub_u32 {sRI}, {sSI}, 27"); a(f"s_mov_b32 {sFI}, {sSI}")
    a(f"s_lshr_b32 {sT2}, {sWAVE}, 1"); a(f"s_and_b32 {sT2}, {sT2}, 1"); a(f"s_lshl_b32 {sT2}, {sT2}, 3")
    a(f"v_lshlrev_b32 v9, 1, v{vG}"); a(f"v_or_b32 v9, {sT2}, v9"); a(f"v_xor_b32 v9, v9, v{vC}")
    a(f"v_lshlrev_b32 v9, 4, v9"); a(f"v_mul_u32_u24 v{vPW}, 1280, v{vG}"); a(f"v_add_u32 v{vPW}, v{vPW}, v9")
    a(f"v_lshrrev_b32 v12, 2, v{vLANE}"); a("v_and_b32 v12, 7, v12"); a("v_lshlrev_b32 v12, 1, v12")
    a(f"v_bfe_u32 v13, v{vLANE}, 1, 1"); a("v_xor_b32 v12, v12, v13"); a("v_lshlrev_b32 v12, 4, v12")
    a(f"v_and_b32 v13, 1, v{vLANE}"); a("v_lshl_add_u32 v12, v13, 3, v12")
    a(f"v_bfe_u32 v13, v{vLANE}, 2, 2"); a(f"v_lshl_add_u32 v13, v{vG}, 3, v13")
    a(f"v_lshl_add_u32 v{vTR}, v13, 8, v12")
    a(f"s_and_b32 {sT2}, {sWAVE}, 1"); a(f"s_lshl_b32 {sT2}, {sT2}, 1"); a(f"s_and_b32 {sT3}, {sWAVE}, 4"); a(f"s_or_b32 {sT2}, {sT2}, {sT3}")
    a(f"v_and_b32 v9, 1, v{vG}"); a(f"v_or_b32 v9, {sT2}, v9"); a(f"v_and_b32 v10, 7, v{vLANE}"); a("v_xor_b32 v9, v9, v10")
    a(f"v_lshrrev_b32 v8, 3, v{vLANE}"); a("v_mul_u32_u24 v8, 3456, v8"); a(f"v_lshl_add_u32 v{vGW}, v9, 4, v8")
    a(f"v_bfe_u32 v13, v{vLANE}, 3, 2"); a(f"v_bfe_u32 v14, v{vLANE}, 1, 1"); a("v_lshl_add_u32 v13, v14, 2, v13")
    a(f"v_xor_b32 v13, {sWAVE}, v13"); a("v_lshlrev_b32 v13, 4, v13")
    a("v_mul_u32_u24 v14, 20480, v14"); a(f"v_add3_u32 v13, v13, v14, {sLW}")
    a(f"v_and_b32 v14, 1, v{vLANE}"); a("v_lshl_add_u32 v13, v14, 3, v13")
    a(f"v_bfe_u32 v14, v{vLANE}, 2, 2"); a(f"v_lshl_add_u32 v14, v{vG}, 3, v14"); a(f"v_lshl_add_u32 v{vGR}, v14, 7, v13")
    a(f"s_mul_i32 {sT0}, {sWAVE}, 5")
    a(f"v_lshrrev_b32 v{fT}, 3, v{vLANE}"); a(f"v_add_u32 v{fT}, {sT0}, v{fT}"); a(f"v_and_b32 v{fT+1}, 3, v{vLANE}")
    a(f"v_lshl_add_u32 v{fT}, v{fT}, 2, v{fT+1}"); a(f"v_lshlrev_b32 v{fT}, 3, v{fT}")
    a(f"v_bfe_u32 v{fT+1}, v{vLANE}, 2, 1")
    a(f"v_mad_u32_u24 v{fA}, v{fT+1}, {sC1280}, v{fT}")
    a(f"buffer_load_dwordx2 {V(fX,2)}, v{fA}, {S(rX)}, 0 offen")
    a(f"v_mul_u32_u24 v{fA+1}, 1344, v{fT+1}"); a(f"v_lshrrev_b32 v{fT+2}, 1, v{fT}"); a(f"v_add_u32 v{fA+1}, v{fA+1}, v{fT+2}"); a(f"v_add_u32 v{fA+1}, {L_HN}, v{fA+1}")
    a(f"v_lshrrev_b32 v{fA}, 5, v{fT}"); a(f"v_lshlrev_b32 v{fA}, 3, v{fA}"); a(f"v_lshl_add_u32 v{fA}, v{fT+1}, 9, v{fA}")
    a(f"v_lshlrev_b32 v{fA+2}, 4, v{vLANE}")
    a(f"s_mul_i32 s90, {sWAVE}, 640"); a(f"s_add_u32 s90, s90, {OFF_YP}")
    for kb in range(1, 4): a(f"s_add_u32 s{90+kb}, s90, {kb*5120}")
    a(f"v_bfe_u32 v{fA+3}, v{vC}, 2, 1"); a(f"v_and_b32 v{fT}, 1, v{vC}")
    a(f"v_mul_u32_u24 v{fA+3}, 1344, v{fA+3}"); a(f"v_lshl_add_u32 v{fA+3}, v{vG}, 4, v{fA+3}")
    a(f"v_lshrrev_b32 v{fT+1}, 3, v{vC}"); a(f"v_lshl_add_u32 v{fT+1}, v{fT}, 1, v{fT+1}"); a(f"v_mul_u32_u24 v{fT+1}, 320, v{fT+1}"); a(f"v_add_u32 v{fA+3}, v{fA+3}, v{fT+1}")
    a(f"v_and_b32 v{fA+4}, 1, v{vG}"); a(f"v_lshlrev_b32 v{fA+4}, 6, v{fA+4}"); a(f"v_lshrrev_b32 v{fT+1}, 1, v{vG}"); a(f"v_lshl_add_u32 v{fA+4}, v{fT+1}, 4, v{fA+4}")
    a(f"v_add_u32 v{fA+4}, v{fA+4}, v{vC}"); a(f"v_lshlrev_b32 v{fA+4}, 3, v{fA+4}"); a(f"v_add_u32 v{fA+4}, {L_SP}, v{fA+4}")
    a(f"v_and_b32 v{fA+5}, 1, v{vG}"); a(f"v_lshlrev_b32 v{fA+5}, 6, v{fA+5}")
    a(f"v_bfe_u32 v{fT+1}, v{vC}, 1, 1"); a(f"v_lshl_add_u32 v{fA+5}, v{fT+1}, 7, v{fA+5}")
    a(f"v_lshl_add_u32 v{fA+5}, v{fT}, 1, v{fA+5}")
    a(f"v_and_b32 v{fT+2}, 4, v{vC}"); a(f"v_add_u32 v{fA+5}, v{fA+5}, v{fT+2}")
    a(f"s_lshl_b32 {sT0}, {sWAVE}, 3"); a(f"v_add_u32 v{fA+5}, {sT0}, v{fA+5}")
    a(f"v_mov_b32 v{fT+2}, 0x4444"); a(f"v_mov_b32 v{fT+3}, 0xeeee")
    a(f"v_cmp_eq_u32 vcc, 1, v{fT+1}"); a(f"v_cndmask_b32 v{fAD+4}, v{fT+2}, v{fT+3}, vcc")
    a(f"v_cmp_eq_u32 vcc, 1, v{fT}"); a(f"v_cndmask_b32 v15, v{fT+2}, v{fT+3}, vcc")
    a(f"v_and_b32 v{fAD}, 3, v{vC}"); a(f"v_lshlrev_b32 v{fAD}, 6, v{fAD}"); a(f"v_lshl_add_u32 v{fAD}, v{vG}, 4, v{fAD}")
    a(f"s_mul_i32 s98, {sFI}, 5120"); a(f"s_mul_i32 {sT2}, {sWAVE}, 640"); a(f"s_add_u32 s98, s98, {sT2}"); a(f"s_add_u32 s98, s98, {OFF_ZP}")
    a(f"v_lshlrev_b32 v{fA+6}, 6, v{vC}"); a(f"v_lshl_add_u32 v{fA+6}, v{vG}, 4, v{fA+6}")
    a(f"v_lshlrev_b32 v{tA}, 3, v{vLANE}"); a(f"v_mov_b32 v{tA+1}, 0")
    rOP, rST, rOW, rOR, rXS, rWO, rFR = 16, 17, 18, 19, 20, 21, 22
    a(f"v_lshrrev_b32 v{fT}, 5, v{vLANE}"); a(f"v_and_b32 v{fT+1}, 31, v{vLANE}")
    a(f"v_mul_u32_u24 v{rOP}, {32*1536}, v{fT}"); a(f"v_lshl_add_u32 v{rOP}, v{fT+1}, 4, v{rOP}")
    a(f"v_lshlrev_b32 v{rST}, 11, v{fT}")
    a(f"s_lshl_b32 {sT2}, {sWAVE}, 8"); a(f"s_add_u32 {sT2}, {sT2}, {L_OB}")
    a(f"v_mul_u32_u24 v{rOW}, 2112, v{fT}"); a(f"v_lshl_add_u32 v{rOW}, v{fT+1}, 2, v{rOW}"); a(f"v_add_u32 v{rOW}, {sT2}, v{rOW}")
    a(f"v_bfe_u32 v{rOR}, v{vC}, 2, 1"); a(f"v_mul_u32_u24 v{rOR}, 2112, v{rOR}"); a(f"v_lshl_add_u32 v{rOR}, v{vG}, 4, v{rOR}")
    a(f"v_and_b32 v{fT}, 1, v{vC}"); a(f"v_lshl_add_u32 v{rOR}, v{fT}, 7, v{rOR}")
    a(f"v_lshrrev_b32 v{fT}, 3, v{vC}"); a(f"v_lshl_add_u32 v{rOR}, v{fT}, 6, v{rOR}")
    a(f"s_lshr_b32 {sT2}, {sWAVE}, 2"); a(f"s_lshl_b32 {sT3}, {sT2}, 10"); a(f"v_add_u32 v{rOR}, {sT3}, v{rOR}")
    a(f"v_lshlrev_b32 v{tA+4}, 2, v{vLANE}")
    a(f"s_and_b32 {sT3}, {sWAVE}, 3"); a(f"s_lshl_b32 {sT0}, {sT3}, 7"); a(f"v_add_u32 v{rXS}, {sT0}, v{tA+4}")
    a(f"v_bfe_u32 v{rFR}, v{vLANE}, 3, 2"); a(f"v_xor_b32 v{rFR}, {sT3}, v{rFR}"); a(f"v_lshlrev_b32 v{rFR}, 5, v{rFR}")
    a(f"v_and_b32 v{fT}, 3, v{vLANE}"); a(f"v_lshl_add_u32 v{rFR}, v{fT}, 3, v{rFR}")
    a(f"v_bfe_u32 v{fT}, v{vLANE}, 2, 2"); a(f"v_lshl_add_u32 v{fT}, v{vG}, 3, v{fT}"); a(f"v_lshl_add_u32 v{rFR}, v{fT}, 7, v{rFR}")
    a(f"s_lshl_b32 {sT2}, {sT2}, 16"); a(f"s_add_u32 {sT2}, {sT2}, {L_W}"); a(f"v_add_u32 v{rFR}, {sT2}, v{rFR}")
    a(f"s_and_b32 {sT2}, {sWAVE}, 1"); a(f"s_lshl_b32 {sT2}, {sT2}, 2")
    a(f"v_and_b32 v{rWO}, 1, v{vG}"); a(f"v_lshlrev_b32 v{rWO}, 1, v{rWO}"); a(f"v_or_b32 v{rWO}, {sT2}, v{rWO}")
    a(f"v_and_b32 v{fT}, 7, v{vLANE}"); a(f"v_xor_b32 v{rWO}, v{rWO}, v{fT}"); a(f"v_lshlrev_b32 v{rWO}, 4, v{rWO}")
    a(f"v_lshrrev_b32 v{fT}, 3, v{vLANE}"); a(f"v_mul_u32_u24 v{fT}, 1280, v{fT}"); a(f"v_add_u32 v{rWO}, v{rWO}, v{fT}")
    a(f"v_lshlrev_b32 v{tA+5}, 6, v{vLANE}")
    a(f"s_lshl_b32 {sT2}, 1, {sWAVE}"); a(f"v_mov_b32 v52, {sT2}")
    a(f"s_min_u32 {sT2}, {sRI}, 63")
    a(f"s_mul_i32 {sT0}, {sT2}, 57"); a(f"s_lshr_b32 {sT0}, {sT0}, 9"); a(f"s_min_u32 {sT0}, {sT0}, 3")
    a(f"s_mul_i32 {sT1}, {sT0}, 9"); a(f"s_sub_u32 {sT1}, {sT2}, {sT1}")
    a(f"s_cmp_lt_u32 {sRI}, 27"); a(f"s_cselect_b32 {sT3}, {sT1}, 0")
    a(f"s_cmp_eq_u32 {sT3}, 8"); a(f"s_cselect_b32 {sDBL}, 1, 0")
    a(f"s_lshl_b32 {sT2}, {sT0}, 4"); a(f"s_add_u32 {sT2}, {sT2}, {sWAVE}"); a(f"s_mul_i32 s9, {sT2}, {8*1280}")
    a(f"s_lshl_b32 {sT2}, {sT1}, 7"); a(f"s_add_u32 s9, s9, {sT2}")
    a(f"s_lshl_b32 {sT2}, {sWAVE}, 2"); a(f"s_add_u32 {sT2}, {sT2}, {sT0}")
    a(f"s_mul_i32 {sOPO}, {sT2}, 1536")
    a(f"s_lshl_b32 {sSTO}, {sT2}, 6"); a(f"s_add_u32 {sSTO}, {sSTO}, {OFF_ST}")
    a(f"s_mul_i32 {sYP}, {sT0}, 5120"); a(f"s_lshl_b32 {sT1}, {sT1}, 9"); a(f"s_add_u32 {sYP}, {sYP}, {sT1}"); a(f"s_add_u32 {sYP}, {sYP}, {OFF_YP}")
    a(f"s_and_b32 {sT1}, {sWAVE}, 3"); a(f"s_lshl_b32 {sT1}, {sT1}, 7"); a(f"s_add_u32 {sYP}, {sYP}, {sT1}")
    a(f"s_and_b32 {sSH}, {sWAVE}, 4")
    a("s_waitcnt vmcnt(0)")
    a(f"v_and_b32 v{fX+3}, 0xffff0000, v{fX+1}"); a(f"v_lshlrev_b32 v{fX+2}, 16, v{fX+1}")
    a(f"v_and_b32 v{fX+1}, 0xffff0000, v{fX}"); a(f"v_lshlrev_b32 v{fX}, 16, v{fX}")
    def stage_ffn(tag, dd):
        fG2 = 232
        srd(rA, pWG, 640 * 3456); srd(rKV, pWD, 1728 * 1280)
        a(f"s_cmp_ge_u32 {sWAVE}, 4"); a(f"s_cselect_b32 s{rA}, s{pWU}, s{rA}"); a(f"s_cselect_b32 s{rA+1}, s{pWU+1}, s{rA+1}")
        a(f"s_and_b32 {sT0}, {sWAVE}, 3")
        a(f"s_mul_i32 {sOFF}, {sT0}, {8*3456}"); a(f"s_lshl_b32 {sT1}, {sFI}, 7"); a(f"s_add_u32 {sOFF}, {sOFF}, {sT1}")
        a(f"s_lshl_b32 {sT0}, {sT0}, 10"); a(f"s_lshr_b32 {sT1}, {sWAVE}, 2"); a(f"s_mul_i32 {sT1}, {sT1}, 20480"); a(f"s_add_u32 {sT0}, {sT0}, {sT1}")
        a(f"s_mul_i32 {sCNT}, {sFI}, {64*1280}"); a(f"s_mul_i32 {sT1}, {sWAVE}, 5120"); a(f"s_add_u32 {sCNT}, {sCNT}, {sT1}")
        a(f"s_lshl_b32 {sT1}, {sWAVE}, 10")
        def issue(c):
            base = L_W + (c % 3) * 40960
            for u in range(5):
                if c < 4:
                    a(f"s_add_u32 m0, {sT0}, {base + u*4096}")
                    a(f"buffer_load_dwordx4 v{vGW}, {S(rA)}, {sOFF} offen {wpol} lds")
                    a(f"s_add_u32 {sOFF}, {sOFF}, {32*3456}")
                else:
                    a(f"s_add_u32 m0, {sT1}, {base + u*8192}")
                    a(f"buffer_load_dwordx4 v{vPW}, {S(rKV)}, {sCNT} offen {wpol} lds")
                    a(f"s_add_u32 {sCNT}, {sCNT}, {256 if u < 4 else 32*1280 - 1024}")
        for c in range(3): issue(c)
        for i in range(5):
            a(f"s_mul_i32 {sT2}, {sWAVE}, 5"); a(f"s_add_u32 {sT2}, {sT2}, {i}")
            a(f"s_and_b32 {sT3}, {sT2}, 7"); a(f"s_lshl_b32 {sT3}, {sT3}, 5")
            a(f"v_xor_b32 v{fG2+i}, {sT3}, v{vTR}")
            a(f"s_lshr_b32 {sT2}, {sT2}, 3"); a(f"s_lshl_b32 {sT2}, {sT2}, 13"); a(f"s_add_u32 {sT2}, {sT2}, {L_W+40960}")
            a(f"v_add_u32 v{fG2+i}, {sT2}, v{fG2+i}")
        a(f"v_add_u32 v{fG2+5}, 81920, v{vGR}")
        for r in range(4): a(f"v_mov_b32 v{fG2+8+r}, 0x3f803f80")
        for c in range(6):
            a(f"s_waitcnt vmcnt({5*min(2, 5-c) + (4 if (early and c >= 3) else 0)})")
            a("s_barrier")
            if c < 4:
                for k in range(5):
                    for hh in range(2):
                        sl = c % 3
                        a(f"ds_read_b64_tr_b16 {V(fGU+4*(5*c+k)+2*hh,2)}, v{vGR if sl < 2 else fG2+5} offset:{(40960 if sl == 1 else 0)+k*4096+hh*512}")
            else:
                for i in range(5):
                    for hh in range(2):
                        a(f"ds_read_b64_tr_b16 {V(fD+8*i+4*(c-4)+2*hh,2)}, v{fG2+i} offset:{(c-4)*40960+hh*1024}")
            if c + 3 < 6:
                a("s_waitcnt lgkmcnt(0)")
                a("s_barrier")
                issue(c + 3)
                if early and c == 2:
                    a(f"v_cmp_gt_u32 vcc, 40, v{vLANE}"); a("s_mov_b64 exec, vcc")
                    for kb in range(4): a(f"buffer_load_dwordx4 {V(fY+4*kb,4)}, v{fA+2}, {S(rWS)}, s{90+kb} offen sc1")
                    a("s_mov_b64 exec, -1")
            if c < 4:
                a("s_waitcnt lgkmcnt(0)")
                for k in range(5):
                    a(f"v_mfma_f32_16x16x32_bf16 {V(fG2+12,4)}, {V(fG2+8,4)}, {V(fGU+4*(5*c+k),4)}, {V(fG2+12,4) if 5*c+k else 0}")
        a(f"v_mov_b32 v47, v{fG2+12}")
        a("s_waitcnt lgkmcnt(0)")
    def wo_issue(extra):
        srd(rA, pWO, 4096 * 1280)
        a(f"s_add_u32 {sOFF}, s9, {extra}")
        a(f"s_lshl_b32 {sT1}, {sWAVE}, 10"); a(f"s_add_u32 m0, {sT1}, {L_W}")
        for u in range(16):
            a(f"buffer_load_dwordx4 v{rWO}, {S(rA)}, {sOFF} offen {wpol} lds")
            a(f"s_add_u32 {sOFF}, {sOFF}, {(64 if u % 2 == 0 else 448)*1280}"); a("s_add_u32 m0, m0, 8192")
    def wo_frags(dst):
        for ks in range(16):
            for hh in range(2):
                a(f"ds_read_b64_tr_b16 {V(dst+4*ks+2*hh,2)}, v{rFR} offset:{ks*4096+hh*512}")
    a(f"s_cmp_eq_u32 {sDBL}, 0"); a("s_cbranch_scc1 L_s_e1")
    wo_issue(128)
    a("s_waitcnt vmcnt(0)")
    a("s_barrier")
    wo_frags(tF2)
    a.label("L_s_e1")
    stamp(2)
    if fst:
        a("s_memtime s[100:101]"); a("s_memrealtime s[70:71]"); a("s_waitcnt lgkmcnt(0)")
    a("s_waitcnt lgkmcnt(0)")
    a("s_barrier")
    if dry:
        a(f"s_mov_b32 {sDRY}, 2"); a(f"s_mov_b64 {sFULL}, 0"); a("s_mov_b64 exec, 0")
    a.label("L_s_tail")
    a(f"s_cmp_ge_u32 {sRI}, 40"); a(f"s_cselect_b32 {sT1}, {64-TRF}, {64-TRR}")
    a(f"s_mov_b32 {sT0}, {OFF_ST}")
    def tr_b():
        a("s_waitcnt vmcnt(0)"); a(f"v_cmp_ne_u32 vcc, {sTAG}, v{tM}")
        a(f"s_bcnt1_i32_b64 {sT2}, vcc"); a(f"s_cmp_gt_u32 {sT2}, {sT1}"); a("s_cselect_b64 vcc, -1, 0")
    a(f"s_cmp_lg_u32 {sWAVE}, 0"); a("s_cbranch_scc1 L_s_trigx")
    poll("L_s_trig", [f"buffer_load_dword v{tM}, v{tA+5}, {S(rWS)}, {sT0} offen offset:4 sc1"], tr_b, sleep=tsleep)
    a.label("L_s_trigx")
    dbar()
    stamp(3)
    a(f"s_cmp_lt_u32 {sRI}, 40"); a("s_cbranch_scc1 L_R")
    a("s_cbranch_execz L_F")
    stage_ffn("d", 31)
    stamp(8)
    a("s_branch L_F")
    a.label("L_R")
    a("s_cbranch_execz L_R_nodma")
    wo_issue(0)
    a.label("L_R_nodma")
    a(f"s_mov_b32 {sT3}, {f32(LOG2E)}")
    a(f"v_cmp_gt_u32 {sM1}, 2, v{vC}")
    tQ = 156
    stl = [f"buffer_load_dwordx4 {V(tQ+4*i,4)}, v{rST}, {S(rWS)}, {sSTO} offen offset:{16*i} sc1" for i in range(3)]
    for l in stl: a(l)
    a("s_waitcnt vmcnt(0)")
    dbar()
    wo_frags(tF)
    def st_chk():
        for i in range(3): a(f"v_bitop3_b32 v{tM+i}, v{tQ+4*i+1}, v{tQ+4*i+3}, {sTAG} bitop3:0x7e")
        a(f"v_or3_b32 v{tM}, v{tM}, v{tM+1}, v{tM+2}")
        a(f"v_cmp_ne_u32 vcc, 0, v{tM}")
    st_chk()
    a("s_cbranch_vccz L_R_stok")
    def st_body():
        a("s_waitcnt vmcnt(0)"); st_chk()
    poll("L_R_pst", stl, st_body, sleep=2)
    a.label("L_R_stok")
    a(f"v_max3_f32 v{tM}, v{tQ}, v{tQ+4}, v{tQ+8}")
    for s_ in range(3): a(f"v_sub_f32 v{tS+2*s_}, v{tQ+4*s_}, v{tM}")
    for s_ in range(3): a(f"v_mul_f32 v{tS+2*s_}, {sT3}, v{tS+2*s_}")
    for s_ in range(3): a(f"v_exp_f32 v{tS+2*s_}, v{tS+2*s_}")
    a(f"v_mul_f32 v{tM}, v{tS}, v{tQ+2}")
    for s_ in range(1, 3): a(f"v_fmac_f32 v{tM}, v{tS+2*s_}, v{tQ+4*s_+2}")
    a(f"v_rcp_f32 v{tM}, v{tM}")
    for s_ in range(3): a(f"v_mul_f32 v{tS+2*s_}, v{tS+2*s_}, v{tM}")
    tAC = 168; tAC2 = 176
    for r in range(16): a(f"v_mov_b32 v{tAC+r}, 0")
    stamp(5)
    sMINE, sDONE = sT1, sT2
    a(f"s_mov_b32 {sMINE}, 0"); a(f"s_mov_b32 {sDONE}, -16"); a(f"s_mov_b32 {sSP}, {4*SPIN}")
    a(f"s_cmp_lg_u32 {sDRY}, 0"); a(f"s_cselect_b32 {sSP}, 2, {sSP}")
    a.label("L_R_loop")
    a(f"s_cmp_lg_u32 {sMINE}, 0"); a("s_cbranch_scc1 L_R_chk")
    if rsleep: a(f"s_sleep {rsleep}")
    for s_ in range(3): a(f"buffer_load_dwordx4 {V(tR[s_],4)}, v{rOP}, {S(rWS)}, {sOPO} offen offset:{512*s_} sc1")
    a.label("L_R_chk")
    a(f"ds_read_b32 v{tS+1}, v{tA+1} offset:{L_RM}")
    a(f"s_sub_u32 {sSP}, {sSP}, 1")
    a("s_waitcnt lgkmcnt(0)")
    a(f"v_readfirstlane_b32 {sT3}, v{tS+1}")
    a(f"s_lshr_b32 {sT3}, {sT3}, {sSH}")
    a(f"s_cmp_eq_u32 {sSP}, 0"); a(f"s_cselect_b32 {sT3}, 15, {sT3}")
    a(f"s_andn2_b32 {sT3}, {sT3}, {sDONE}")
    a("s_cbranch_scc0 L_R_own")
    a(f"s_or_b32 {sDONE}, {sDONE}, {sT3}")
    for hh in range(4):
        a(f"s_bitcmp1_b32 {sT3}, {hh}"); a(f"s_cbranch_scc0 L_R_h{hh}")
        a(f"ds_read_b128 {V(tO[hh],4)}, v{rOR} offset:{L_OB+256*hh}")
        a("s_waitcnt lgkmcnt(0)")
        for k in range(2): a(f"v_smfmac_f32_16x16x64_bf16 {V(tAC+4*k,4)}, {V(tO[hh],4)}, {V(tF+16*hh+8*k,8)}, v15")
        a(f"s_cmp_eq_u32 {sDBL}, 0"); a(f"s_cbranch_scc1 L_R_h{hh}")
        for k in range(2): a(f"v_smfmac_f32_16x16x64_bf16 {V(tAC2+4*k,4)}, {V(tO[hh],4)}, {V(tF2+16*hh+8*k,8)}, v15")
        a.label(f"L_R_h{hh}")
    a(f"s_cmp_eq_u32 {sDONE}, -1"); a("s_cbranch_scc1 L_R_fin")
    a.label("L_R_own")
    a(f"s_cmp_lg_u32 {sMINE}, 0"); a("s_cbranch_scc1 L_R_chk")
    for s_ in range(3):
        r_ = tR[s_]
        a(f"s_waitcnt vmcnt({2-s_})")
        for e in range(4): a(f"v_xor_b32 v{r_+e}, {sTB}, v{r_+e}")
        for e in (0, 2):
            if s_ == 0: a(f"v_pk_mul_f32 {V(tM+e,2)}, {V(r_+e,2)}, {V(tS,2)} op_sel_hi:[1,0]")
            else: a(f"v_pk_fma_f32 {V(tM+e,2)}, {V(r_+e,2)}, {V(tS+2*s_,2)}, {V(tM+e,2)} op_sel_hi:[1,0,1]")
        if s_ == 0: a(f"v_or_b32 v{tQ}, v{r_}, v{r_+1}")
        else: a(f"v_or3_b32 v{tQ}, v{tQ}, v{r_}, v{r_+1}")
        a(f"v_or3_b32 v{tQ}, v{tQ}, v{r_+2}, v{r_+3}")
    a(f"v_cmp_ne_u32_sdwa vcc, v{tQ}, 0 src0_sel:BYTE_0 src1_sel:DWORD")
    a(f"v_cvt_pk_bf16_f32 v{tM}, v{tM}, v{tM+1}"); a(f"v_cvt_pk_bf16_f32 v{tM+2}, v{tM+2}, v{tM+3}")
    a(f"s_cmp_lt_u32 {sSP}, 64"); a(f"s_cselect_b64 {sM2}, 0, -1"); a(f"s_and_b64 vcc, vcc, {sM2}")
    a("s_cbranch_vccnz L_R_loop")
    a(f"ds_write2_b32 v{rOW}, v{tM}, v{tM+2} offset0:0 offset1:32")
    exset(1)
    a(f"ds_or_b32 v{tA+1}, v52 offset:{L_RM}")
    exfull()
    a(f"s_mov_b32 {sMINE}, 1")
    stamp(6)
    a("s_branch L_R_chk")
    a.label("L_R_fin")
    def rfin(ac, off):
        a(f"v_add_f32 v{ac}, v{ac}, v{ac+1}"); a(f"v_add_f32 v{ac+4}, v{ac+4}, v{ac+5}")
        a(f"v_permlane32_swap_b32 v{ac+4}, v{ac+2}")
        a(f"v_add_f32 v{ac}, v{ac}, v{ac+2}")
        exset("0xffffffff")
        a(f"ds_wrxchg_rtn_b32 v{ac+1}, v{rXS}, v{ac} offset:{L_XS+off}")
        a("s_waitcnt lgkmcnt(0)")
        a(f"v_cmp_ne_u32 vcc, -1, v{ac+1}")
        a(f"v_add_f32 v{ac}, v{ac}, v{ac+1}")
        settag(ac, ac)
        a("s_and_b64 exec, exec, vcc")
        a(f"buffer_store_dword v{ac}, v{tA+4}, {S(rWS)}, {sYP} offen offset:{off} sc1")
        exfull()
    a("s_nop 3")
    rfin(tAC, 0)
    a(f"s_cmp_eq_u32 {sDBL}, 0"); a("s_cbranch_scc1 L_R_x")
    rfin(tAC2, 512)
    a.label("L_R_x")
    exfull()
    stamp(7)
    a("s_branch L_end")
    a.label("L_F")
    a(f"s_mov_b32 {sT3}, 0x3f803f80")
    a(f"v_cmp_gt_u32 {sM0}, 40, v{vLANE}")
    fZD = 232
    for r in range(8): a(f"v_mov_b32 v{fZ+r}, 0")
    for r in range(20): a(f"v_mov_b32 v{fZD+r}, 0")
    exset(sM0)
    if stamps: a("s_waitcnt vmcnt(0)")
    if True:
        fAc = fY + 32; sV = sT1
        for r in range(4): a(f"v_mov_b32 v{fAc+r}, 0")
        a(f"s_mov_b32 {sV}, 0"); a(f"s_mov_b32 {sSP}, {SPIN}")
        if early: a("s_cbranch_execnz L_F_i3")
        a.label("L_F_poll")
        if psleep: a(f"s_sleep {psleep}")
        for kb in range(4):
            a(f"s_bitcmp1_b32 {sV}, {kb}"); a(f"s_cbranch_scc1 L_F_i{kb}")
            a(f"buffer_load_dwordx4 {V(fY+4*kb,4)}, v{fA+2}, {S(rWS)}, s{90+kb} offen sc1")
            a.label(f"L_F_i{kb}")
        a(f"s_sub_u32 {sSP}, {sSP}, 1"); a(f"s_cmp_eq_u32 {sSP}, 0"); a(f"s_cselect_b64 {sM2}, 0, -1")
        a("s_waitcnt vmcnt(0)")
        for kb in range(4):
            b_ = fY + 4 * kb
            a.label(f"L_F_c{kb}")
            a(f"s_bitcmp1_b32 {sV}, {kb}"); a(f"s_cbranch_scc1 L_F_c{kb+1}")
            chktag(range(b_, b_ + 4), fAc + 4, fAc + 5)
            a(f"s_and_b64 vcc, vcc, {sM2}")
            a(f"s_cbranch_vccnz L_F_c{kb+1}")
            a(f"v_pk_add_f32 {V(fAc,2)}, {V(fAc,2)}, {V(b_,2)}"); a(f"v_pk_add_f32 {V(fAc+2,2)}, {V(fAc+2,2)}, {V(b_+2,2)}")
            a(f"s_bitset1_b32 {sV}, {kb}")
            a(f"s_cmp_eq_u32 {sV}, 15"); a("s_cbranch_scc1 L_F_got")
        a.label("L_F_c4")
        a("s_branch L_F_poll")
        a.label("L_F_got")
        a(f"v_cvt_pk_bf16_f32 v{fAc+10}, v{fAc}, v{fAc+1}"); a(f"v_cvt_pk_bf16_f32 v{fAc+11}, v{fAc+2}, v{fAc+3}")
        a.label("L_F_got2")
        a(f"v_and_b32 v{fY+1}, 0xffff0000, v{fAc+10}"); a(f"v_lshlrev_b32 v{fY}, 16, v{fAc+10}")
        a(f"v_and_b32 v{fY+3}, 0xffff0000, v{fAc+11}"); a(f"v_lshlrev_b32 v{fY+2}, 16, v{fAc+11}")
    a(f"v_pk_add_f32 {V(fY,2)}, {V(fY,2)}, {V(fX,2)}"); a(f"v_pk_add_f32 {V(fY+2,2)}, {V(fY+2,2)}, {V(fX+2,2)}")
    a(f"v_cvt_pk_bf16_f32 v{fY}, v{fY}, v{fY+1}"); a(f"v_cvt_pk_bf16_f32 v{fY+1}, v{fY+2}, v{fY+3}")
    a(f"ds_write2_b32 v{fA+1}, v{fY}, v{fY+1} offset0:0 offset1:160")
    a(f"v_dot2_f32_bf16 v{fY+2}, v{fY}, {sT3}, 0"); a(f"v_dot2_f32_bf16 v{fY+3}, v{fY}, v{fY}, 0")
    a(f"v_dot2_f32_bf16 v{fY+2}, v{fY+1}, {sT3}, v{fY+2}"); a(f"v_dot2_f32_bf16 v{fY+3}, v{fY+1}, v{fY+1}, v{fY+3}")
    for mod in ROWRED[:2]:
        for r in (2, 3): a(f"v_add_f32_dpp v{fY+r}, v{fY+r}, v{fY+r} {mod} {DPPF}")
    a(f"ds_write_b64 v{fA}, {V(fY+2,2)} offset:{L_SP}")
    exfull()
    if not fst: stamp(9)
    cyc(0)
    a("s_waitcnt lgkmcnt(0)")
    dbar()
    cyc(1)
    if fst: a("s_waitcnt lgkmcnt(0)")
    s1, s2, sr = fT, fT + 1, fT + 2
    fS = 204
    a(f"ds_read2_b64 {V(fS,4)}, v{fA+4} offset0:0 offset1:32")
    for ks in range(5): a(f"ds_read_b128 {V(fB+4*ks,4)}, v{fA+3} offset:{L_HN+64*ks}")
    VL = []
    VL.append(f"v_pk_add_f32 {V(s1,2)}, {V(fS,2)}, {V(fS+2,2)}")
    VL.append(None)
    VL.append(f"v_permlane32_swap_b32 v{s1}, v{s2}")
    VL.append(f"v_add_f32 v{s1}, v{s1}, v{s2}")
    for mod in ROWRED: VL.append(None); VL.append(f"v_add_f32_dpp v{s1}, v{s1}, v{s1} {mod} {DPPF}")
    VL.append(f"v_mul_f32 v{s1}, {f32(1/640)}, v{s1}")
    VL.append(f"v_mov_b32 v{s2}, v{s1}")
    VL.append(None)
    VL.append(f"v_permlane32_swap_b32 v{s1}, v{s2}")
    VL.append(f"v_fma_f32 v{s2}, -v{s1}, v{s1}, v{s2}")
    VL.append(f"v_max_f32 v{s2}, 0, v{s2}")
    VL += ln_finish_l(s1, s2, sr)
    VL.append(f"v_mul_f32 v{s1}, v{s1}, v47")
    vi = 0
    for m in range(10):
        ks = m >> 1; cl = m & 1
        if m == 0:
            a("s_waitcnt lgkmcnt(5)")
            a(VL[vi]); vi += 1
        if cl == 0: a(f"s_waitcnt lgkmcnt({4-ks})")
        a(f"v_smfmac_f32_16x16x64_bf16 {V(fZ+4*cl,4)}, {V(fB+4*ks,4)}, {V(fGU+8*(ks+5*cl),8)}, v15")
        if True:
            cnt = 0
            while vi < len(VL) and cnt < 4:
                if VL[vi] is None:
                    vi += 1
                    if cnt: break
                    continue
                a(VL[vi]); vi += 1; cnt += 1
    while vi < len(VL):
        if VL[vi]: a(VL[vi])
        vi += 1
    cyc(2)
    g_, t_ = fZ + 12, fZ + 14
    a(f"v_add_f32 v{fZ+4}, v{fZ+4}, v{fZ+5}")
    a(f"v_sub_f32 v{g_}, v{fZ}, v{s1}")
    a(f"v_add_f32 v{g_}, v{g_}, v{fZ+1}")
    a(f"v_permlane32_swap_b32 v{fZ+4}, v{fZ+2}")
    a(f"v_add_f32 v{g_}, v{g_}, v{fZ+2}")
    a(f"v_mul_f32 v{g_}, v{g_}, v{sr}")
    bf16r(f"v{g_}", f"v{g_}")
    a(f"v_mul_f32 v{t_}, v{g_}, v{g_}")
    c1 = -2.0 * 0.7978845608028654 * LOG2E
    a(f"v_mov_b32 v{t_+1}, {f32(c1)}")
    a(f"v_fmac_f32 v{t_+1}, {f32(c1 * 0.044715)}, v{t_}")
    a(f"v_mul_f32 v{t_}, v{t_+1}, v{g_}")
    a(f"v_exp_f32 v{t_}, v{t_}")
    a(f"v_add_f32 v{t_}, 1.0, v{t_}")
    a(f"v_rcp_f32 v{t_}, v{t_}")
    a(f"v_mul_f32 v{t_}, v{g_}, v{t_}")
    bf16r(f"v{t_}", f"v{t_}")
    a(f"v_mul_f32_dpp v{t_}, v{g_}, v{t_} row_ror:8 {DPPF}")
    a(f"v_cvt_pk_bf16_f32 v{t_}, v{t_}, v{t_}")
    exset("0x00ff00ff")
    a(f"ds_write_b16 v{fA+5}, v{t_} offset:{L_AC}")
    exfull()
    cyc(3)
    a("s_waitcnt lgkmcnt(0)")
    a.label("L_F_b2")
    dbar()
    cyc(4)
    if fst: a("s_waitcnt lgkmcnt(0)")
    a(f"ds_read_b128 {V(fB,4)}, v{fAD} offset:{L_AC}")
    a("s_waitcnt lgkmcnt(0)")
    for i in (4, 0, 1, 2, 3):
        a(f"v_smfmac_f32_16x16x64_bf16 {V(fZD+4*i,4)}, {V(fB,4)}, {V(fD+8*i,8)}, v{fAD+4}")
    a(f"v_pk_add_f32 {V(fZD+16,2)}, {V(fZD+16,2)}, {V(fZD+18,2)}")
    a(f"v_pk_add_f32 {V(fZ,2)}, {V(fZD,2)}, {V(fZD+2,2)}")
    settag(fZD + 16, fZD + 16); settag(fZD + 17, fZD + 17)
    for i in (1, 2, 3):
        if i == 3:
            exset("0xffff")
            a(f"buffer_store_dwordx2 {V(fZD+16,2)}, v{tA}, {S(rWS)}, s98 offen offset:512 sc1")
            exfull()
        for r in range(2): a(f"v_add_f32_dpp v{fZ+r}, v{fZD+4*i+r}, v{fZD+4*i+2+r} quad_perm:[0,1,2,3] row_mask:{hex(1<<i)} bank_mask:0xf")
    settag(fZ, fZ); settag(fZ + 1, fZ + 1)
    a(f"buffer_store_dwordx2 {V(fZ,2)}, v{tA}, {S(rWS)}, s98 offen sc1")
    cyc(5); cyc(6)
    a(f"s_cmp_lg_u32 {sFI}, 0"); a("s_cbranch_scc1 L_F_x")
    a(f"s_cmp_lg_u32 {sWAVE}, 4"); a("s_cbranch_scc1 L_F_x")
    exset(1)
    a(f"v_mov_b32 v{fB}, {sTAG}"); a(f"s_mov_b32 {sT0}, {OFF_EP}")
    a(f"buffer_store_dword v{fB}, v{tA+1}, {S(rWS)}, {sT0} offen sc1")
    a.label("L_F_x")
    exfull()
    if fst:
        cyc(7)
        a("s_memrealtime s[32:33]")
        a("s_waitcnt lgkmcnt(0)")
        a("s_lshl_b32 s86, s2, 3"); a(f"s_add_u32 s86, s86, {sWAVE}"); a("s_lshl_b32 s86, s86, 7"); a(f"s_add_u32 s86, s86, {OFF_TS + 0x40000}")
        exset(1)
        for i in range(9):
            a(f"v_mov_b32 v60, s{16+2*i}"); a(f"v_mov_b32 v61, s{17+2*i}"); a("v_mov_b32 v62, 0")
            a(f"buffer_store_dwordx2 v[60:61], v62, {S(rWS)}, s86 offen offset:{8*i}")
        a("v_mov_b32 v60, s100"); a("v_mov_b32 v61, s101")
        a(f"buffer_store_dwordx2 v[60:61], v62, {S(rWS)}, s86 offen offset:72")
        a("v_mov_b32 v60, s70"); a("v_mov_b32 v61, s71")
        a(f"buffer_store_dwordx2 v[60:61], v62, {S(rWS)}, s86 offen offset:80")
        exfull()
        a.label("L_F_y")
    stamp(10)
    a.label("L_end")
    if dry:
        a(f"s_cmp_eq_u32 {sDRY}, 0"); a("s_cbranch_scc1 L_exit")
        a(f"s_mov_b32 {sDRY}, 0"); a(f"s_mov_b64 {sFULL}, -1"); a("s_mov_b64 exec, -1")
        a("s_waitcnt vmcnt(0) lgkmcnt(0)")
        a("s_branch L_s_tail")
    a.label("L_exit")
    a("s_endpgm")

    hdr = open("sequential_preLN__gqa_block_cached__geglu_ffn__decode.s.ref").read().split("; Override launch")[0]
    return hdr + f"""; @launch grid=(256,1,1) block=(512,1,1) lds={LDS_BYTES}
.amdgcn_target "amdgcn-amd-amdhsa--gfx950"
.text
.globl {NAME}
.p2align 8
.type {NAME},@function
{NAME}:
""" + a.finalize() + f""".section .rodata,"a"
.p2align 6
.amdhsa_kernel {NAME}
  .amdhsa_next_free_vgpr 256
  .amdhsa_next_free_sgpr 102
  .amdhsa_accum_offset 256
  .amdhsa_group_segment_fixed_size 0
  .amdhsa_kernarg_size 96
  .amdhsa_user_sgpr_count 2
  .amdhsa_user_sgpr_kernarg_segment_ptr 1
  .amdhsa_system_sgpr_workgroup_id_x 1
  .amdhsa_float_denorm_mode_32 3
.end_amdhsa_kernel
"""

if __name__ == "__main__":
    kw = eval("dict(%s)" % (sys.argv[2] if len(sys.argv) > 2 else ""))
    open(sys.argv[1], "w").write(gen(**kw))
```

```python
import sys, struct
sys.path.insert(0, "gen")
from asmlib import Asm

NAME = "sequential_preLN__gqa_block_cached__geglu_ffn__decode_kernel"
def f32(x): return "0x%08x" % struct.unpack("<I", struct.pack("<f", x))[0]

SPR = 3
OFF_OP = 0x0
OFF_ST = 0x18000
OFF_YP = 0x19000
OFF_ZP = 0x23000
OFF_QP = 0x48000
OFF_EP = 0x58000
OFF_TS = 0x100000
WS_SIZE = 0x200000
L_Q = 0
L_ST = 256
L_CNT = 320
L_OP = 16384
L_OB = 4352
L_HN = 6912
L_XS = 9600
L_SP = 11008
L_AC = 13568
L_RM = 14016
L_W = 16384
LDS_BYTES = L_W + 131072
NS = 64 * SPR
R_FIRST = 24
LOG2E = 1.4426950408889634
SPIN = 400000
NG = 6
NSTEP = 86

def gen(NGR=3, DK=4, DV=4, DP=4, DE=4, NEND=0, QAT=33, QSTART=44, QW=0, BUD=24, SIDEAT=70, DPAT=None, strip=0, fewst=False, nosvc=False, defer=True, swap=True, dmaF=31, TRF=14, TRR=2, tsleep=3, skipv=True, kbx=True, opol='', pf=0, assist=0, idrot=0, rspec=False, est=False, early=False, earlyR=False, bulk=False, aspol='', pfpol='nt', pfbar=True, pf64=True, noclr=False, noside=False, nob0=False, sv=9, noflag=False, skipclr=False, cpol='sc1', ctr=False, stamps=False, wqpol="nt", wpol="nt", kvpol="nt", dmad=7, dry=True, norole=False, gsleep=6, nodma=False, fst=False, psleep=1, osleep=0, rsleep=1):
    a = Asm()
    R = 16 * NGR
    sWAVE, sROW, sS, sREC, sSI = "s3", "s6", "s8", "s9", "s7"
    pX, pK, pV, pWQ, pWO, pWG, pWU, pWD, pOUT, pDBG, pWS = 16, 18, 20, 22, 24, 28, 30, 32, 34, 36, 38
    rWS, rKV, rA, rB2, rX, rDBG, rOUT = 40, 44, 48, 52, 56, 60, 92
    sLW, sC1280 = "s14", "s99"
    sOFF, sCNT, sT0, sT1, sT2, sT3 = "s64", "s65", "s66", "s67", "s68", "s69"
    sVB = 70
    sM0, sM1, sM2 = "s[72:73]", "s[74:75]", "s[76:77]"
    sFULL = "s[78:79]"
    sFI, sRI, sSP, sDRY, sOFF0, sSTEP, sTAG, sND = "s80", "s81", "s82", "s83", "s10", "s11", "s12", "s13"
    def srd(r, p, size, off=None):
        if off is None:
            a(f"s_mov_b32 s{r}, s{p}"); a(f"s_mov_b32 s{r+1}, s{p+1}")
        else:
            a(f"s_add_u32 s{r}, s{p}, {off}"); a(f"s_addc_u32 s{r+1}, s{p+1}, 0")
        a(f"s_mov_b32 s{r+2}, {size}"); a(f"s_mov_b32 s{r+3}, 0x20000")
    def S(r): return f"s[{r}:{r+3}]"
    def V(r, n=1): return f"v{r}" if n == 1 else f"v[{r}:{r+n-1}]"
    def exset(m): a(f"s_and_b64 exec, {sFULL}, {m}")
    def exfull(): a(f"s_mov_b64 exec, {sFULL}")
    nb = [0]
    def uid():
        nb[0] += 1; return nb[0]
    def dbar():
        n = uid()
        a(f"s_cbranch_execz L_nb{n}"); a("s_barrier"); a.label(f"L_nb{n}")
    def stamp(idx):
        if not stamps: return
        if fewst and idx in (1, 2, 8): return
        if fewst == 2 and idx not in (0, 3, 7): return
        a("s_memrealtime s[84:85]")
        a("s_lshl_b32 s86, s2, 3"); a(f"s_add_u32 s86, s86, {sWAVE}"); a("s_lshl_b32 s86, s86, 7"); a(f"s_add_u32 s86, s86, {OFF_TS + idx*8}")
        a("s_waitcnt lgkmcnt(0)")
        a("s_mov_b64 s[88:89], exec")
        exset(1)
        a("v_mov_b32 v60, s84"); a("v_mov_b32 v61, s85"); a("v_mov_b32 v62, 0")
        a(f"buffer_store_dwordx2 v[60:61], v62, {S(rWS)}, s86 offen")
        a("s_mov_b64 exec, s[88:89]")
    def cyc(i):
        if fst: a(f"s_memtime s[{16+2*i}:{17+2*i}]")
    def bf16r(dst, src):
        a(f"v_cvt_pk_bf16_f32 {dst}, {src}, {src}"); a(f"v_and_b32 {dst}, 0xffff0000, {dst}")
    DPPF = "row_mask:0xf bank_mask:0xf"
    ROWRED = ("quad_perm:[1,0,3,2]", "quad_perm:[2,3,0,1]", "row_half_mirror", "row_mirror")
    def wave_reduce(op, regs, tmp, half=False):
        for mod in ROWRED:
            for r in regs: a(f"{op}_dpp v{r}, v{r}, v{r} {mod} {DPPF}")
        for sw in ("v_permlane16_swap_b32",) + (() if half else ("v_permlane32_swap_b32",)):
            for r, t in zip(regs, tmp): a(f"v_mov_b32 v{t}, v{r}")
            for r, t in zip(regs, tmp): a(f"{sw} v{r}, v{t}")
            for r, t in zip(regs, tmp): a(f"{op} v{r}, v{r}, v{t}")
    def poll(lbl, loads, body, sleep=0):
        a(f"s_mov_b32 {sSP}, {SPIN}")
        if sleep:
            a(f"s_branch {lbl}_e")
        a.label(lbl)
        if sleep:
            a(f"s_sleep {sleep}"); a.label(f"{lbl}_e")
        for l in loads: a(l)
        a(f"s_sub_u32 {sSP}, {sSP}, 1"); a(f"s_cmp_eq_u32 {sSP}, 0"); a(f"s_cselect_b64 {sM2}, 0, -1")
        body()
        a(f"s_and_b64 vcc, vcc, {sM2}")
        a(f"s_cbranch_vccnz {lbl}")
    def ln_finish_l(vmean, vvar, t0):
        L = []
        def b(d): L.append(f"v_cvt_pk_bf16_f32 v{d}, v{d}, v{d}"); L.append(f"v_and_b32 v{d}, 0xffff0000, v{d}")
        b(vvar); L.append(f"v_add_f32 v{vvar}, {f32(1e-5)}, v{vvar}"); b(vvar)
        L.append(f"v_sqrt_f32 v{vvar}, v{vvar}"); b(vmean); b(vvar)
        L.append(f"v_rcp_f32 v{t0}, v{vvar}")
        return L
    def settag(dst, src):
        a(f"v_bfi_b32 v{dst}, v{vFF}, {sTAG}, v{src}")
    sTB = "s60"
    def chktag(regs, t0, t1=None):
        regs = list(regs)
        for r in regs: a(f"v_xor_b32 v{r}, {sTB}, v{r}")
        if len(regs) == 1: t0 = regs[0]
        else:
            a(f"v_or3_b32 v{t0}, v{regs[0]}, v{regs[1]}, v{regs[2]}"); a(f"v_or_b32 v{t0}, v{t0}, v{regs[3]}")
        a(f"v_cmp_ne_u32_sdwa vcc, v{t0}, 0 src0_sel:BYTE_0 src1_sel:DWORD")
    vFF = 63
    def mktag(vreg=None):
        a(f"s_mul_i32 {sTAG}, {sTAG}, 0x9E3779B1"); a(f"s_add_u32 {sTAG}, {sTAG}, 0x7F4A7C15"); a(f"s_and_b32 {sTB}, {sTAG}, 0xff")

    vLANE, vG, vC = 1, 2, 3
    vMASK = 4
    if est: a("s_memrealtime s[96:97]")
    a("s_cmp_ge_u32 s2, 256"); a("s_cbranch_scc1 L_exit")
    a("s_load_dwordx16 s[16:31], s[0:1], 0")
    if idrot: a(f"s_add_u32 s2, s2, {idrot}"); a("s_and_b32 s2, s2, 255")
    a("s_load_dwordx8 s[32:39], s[0:1], 64")
    a("v_lshrrev_b32 v2, 6, v0")
    a(f"v_and_b32 v{vLANE}, 63, v0")
    a(f"v_readfirstlane_b32 {sWAVE}, v2")
    a("s_sub_u32 s15, s2, 64")
    a("s_and_b32 s4, s15, 7"); a("s_lshr_b32 s5, s15, 3"); a("s_and_b32 s5, s5, 31")
    a(f"s_mul_i32 {sT0}, s5, 43"); a(f"s_lshr_b32 {sT0}, {sT0}, 7"); a(f"s_mul_i32 {sS}, {sT0}, 3"); a(f"s_sub_u32 {sS}, s5, {sS}")
    a(f"s_lshr_b32 {sROW}, {sT0}, 1"); a(f"s_lshl_b32 {sROW}, {sROW}, 3"); a(f"s_add_u32 {sROW}, {sROW}, s4")
    a(f"s_and_b32 {sT0}, {sT0}, 1"); a(f"s_lshl_b32 {sT0}, {sT0}, 5"); a(f"s_add_u32 {sROW}, {sROW}, {sT0}")
    a(f"s_and_b32 {sROW}, {sROW}, 63")
    a(f"s_lshl_b32 {sT0}, {sROW}, 21"); a(f"s_mul_i32 {sT1}, {sS}, {683*1024}"); a(f"s_add_u32 {sT0}, {sT0}, {sT1}")
    a(f"s_cmp_eq_u32 {sS}, 2"); a(f"s_cselect_b32 {sND}, 682, 683" if False else f"s_cselect_b32 {sND}, 1, 0")
    a(f"s_sub_u32 {sND}, 683, {sND}"); a(f"s_lshl_b32 {sT1}, {sND}, 10")
    a(f"v_lshlrev_b32 v8, 4, v0")
    a(f"s_mov_b32 {sOFF}, 0"); a(f"s_movk_i32 {sSTEP}, 8192")
    a(f"s_mov_b64 {sFULL}, -1"); a(f"s_mov_b32 {sDRY}, 0")
    a(f"v_lshrrev_b32 v{vG}, 4, v{vLANE}"); a(f"v_and_b32 v{vC}, 15, v{vLANE}")
    if est: a("s_memrealtime s[100:101]")
    a("s_waitcnt lgkmcnt(0)")
    srd(rKV, pK, sT1, sT0)
    a(f"s_load_dword {sTAG}, s[{pWS}:{pWS+1}], {OFF_EP}")
    srd(rWS, pWS, WS_SIZE)
    a(f"s_cmp_lt_u32 s2, 64"); a("s_cbranch_scc1 L_service")

    vOFF = 8; vQ = 10; vACC = 14; vBOP = 18; vMX = 26; vL = 27; vT = 28; vFLG = 32; vFW = 34; vSC = 36; vP = 44; vRING = 64
    stamp(0)
    qld = [f"buffer_load_dwordx2 {V(vP,2)}, v{vFLG}, {S(rWS)}, {sT2} offen sc1", f"buffer_load_dwordx2 {V(vP+2,2)}, v{vFLG}, {S(rWS)}, {sT2} offen offset:1024 sc1"]
    def setup():
        a(f"v_lshlrev_b32 v{vT}, 2, v{vLANE}"); a(f"v_cmp_gt_u32 vcc, 16, v{vLANE}"); a(f"v_cndmask_b32 v{vT+2}, 0, -1, vcc")
        a("s_mov_b64 exec, 0x3ffff")
        a(f"ds_write_b32 v{vT}, v{vT+2} offset:{L_ST}")
        a("s_mov_b64 exec, -1")
        srd(rX, pX, 2560); srd(rOUT, pOUT, 2560)
        a(f"s_add_u32 s{sVB}, s{pV}, {sT0}"); a(f"s_addc_u32 s{sVB+1}, s{pV+1}, 0")
        a(f"s_mul_i32 {sREC}, {sROW}, 3"); a(f"s_add_u32 {sREC}, {sREC}, {sS}")
        a("s_waitcnt lgkmcnt(0)")
        a("s_barrier")
        mktag()
        a(f"v_mov_b32 v{vFF}, 0xff")
        a(f"v_and_b32 v9, 1, v{vC}"); a("v_lshlrev_b32 v9, 4, v9"); a("v_mov_b32 v7, 0xffff"); a("v_lshlrev_b32 v9, v9, v7")
        a(f"v_lshrrev_b32 v7, 1, v{vC}")
        for r in range(4):
            a(f"v_cmp_eq_u32 vcc, {r}, v7"); a(f"v_cndmask_b32 v{vMASK+r}, 0, v9, vcc")
        a(f"v_lshlrev_b32 v{vFLG}, 3, v{vLANE}")
        a(f"v_mov_b32 v{vT+1}, 0")
        a(f"s_and_b32 {sT2}, {sROW}, 31"); a(f"s_lshl_b32 {sT2}, {sT2}, 11"); a(f"s_lshr_b32 {sT3}, {sROW}, 5"); a(f"s_lshl_b32 {sT3}, {sT3}, 9")
        a(f"s_add_u32 {sT2}, {sT2}, {sT3}"); a(f"s_add_u32 {sT2}, {sT2}, {OFF_QP}")
        a(f"v_lshlrev_b32 v{vT+2}, 4, v{vLANE}")
        a(f"v_bfe_u32 v{vT+3}, v{vLANE}, 1, 4"); a(f"v_lshlrev_b32 v{vT+3}, 4, v{vT+3}")
        a(f"v_lshrrev_b32 v{vT}, 5, v{vLANE}"); a(f"v_lshl_add_u32 v{vT+3}, v{vT}, 3, v{vT+3}")
        a(f"v_and_b32 v{vT}, 1, v{vLANE}"); a(f"v_lshl_add_u32 v{vT+3}, v{vT}, 2, v{vT+3}")
        a(f"v_lshlrev_b32 v{vT}, 4, v{vC}")
    def q_issue():
        a(f"s_cmp_lg_u32 {sWAVE}, {QW}"); a("s_cbranch_scc1 L_p2")
        for l in qld: a(l)
        a.label("L_p2")
    def q_chk():
        a(f"s_and_b32 {sT3}, {sTAG}, 15")
        for r in range(4): a(f"v_xor_b32 v{vP+r}, {sT3}, v{vP+r}")
        a(f"v_or3_b32 v{vP+4}, v{vP}, v{vP+1}, v{vP+2}"); a(f"v_or_b32 v{vP+4}, v{vP+4}, v{vP+3}"); a(f"v_and_b32 v{vP+4}, 15, v{vP+4}")
        a(f"v_cmp_ne_u32 vcc, 0, v{vP+4}")
    def q_take():
        a(f"s_cmp_lg_u32 {sWAVE}, {QW}"); a("s_cbranch_scc1 L_p3")
        q_chk()
        a("s_cbranch_vccz L_qok")
        def q_body():
            a("s_waitcnt vmcnt(0)"); q_chk()
        poll("L_qpoll", qld, q_body)
        stamp(9)
        a.label("L_qok")
        a(f"v_pk_add_f32 {V(vP,2)}, {V(vP,2)}, {V(vP+2,2)}")
        a(f"v_cvt_pk_bf16_f32 v{vP}, v{vP}, v{vP+1}"); a(f"v_mov_b32 v{vP+1}, 1")
        a(f"ds_write_b32 v{vT+3}, v{vP} offset:{L_Q}")
        a(f"ds_write_b32 v{vT+1}, v{vP+1} offset:{L_CNT+4}")
        a.label("L_p3")
    def q_get():
        stamp(8)
        def b():
            a("s_waitcnt lgkmcnt(0)"); a(f"v_cmp_eq_u32 vcc, 0, v{vP}")
        poll("L_qget", [f"ds_read_b32 v{vP}, v{vT+1} offset:{L_CNT+4}", f"ds_read_b128 {V(vQ,4)}, v{vT} offset:{L_Q}"], b)
        a(f"v_and_b32 v{vT}, 3, v{vC}")
        a(f"v_cmp_eq_u32 {sM0}, 1, v{vT}"); a(f"v_cmp_eq_u32 {sM1}, 2, v{vT}"); a(f"v_cmp_eq_u32 {sM2}, 3, v{vT}")
        a(f"s_mov_b32 {sT3}, {f32(128 ** -0.5)}")
        stamp(1)
    def side():
        def st_l():
            a("s_waitcnt lgkmcnt(0)")
            a(f"v_cmp_eq_u32 vcc, -1, v{vP+1}")
        poll("L_side", [f"ds_read_b64 {V(vP,2)}, v{vFW+1} offset:{L_ST}"], st_l)
        a(f"v_mov_b32 v{vP+2}, v{vP}")
        for mod in ROWRED[:3]: a(f"v_max_f32_dpp v{vP+2}, v{vP+2}, v{vP+2} {mod} {DPPF}")
        a(f"v_sub_f32 v{vFW}, v{vMX}, v{vP+2}"); a(f"v_sub_f32 v{vP}, v{vP}, v{vP+2}")
        a(f"v_mul_f32 v{vFW}, {sT3}, v{vFW}"); a(f"v_mul_f32 v{vP}, {sT3}, v{vP}")
        a(f"v_exp_f32 v{vFW}, v{vFW}"); a(f"v_exp_f32 v{vP}, v{vP}")
        a(f"v_mul_f32 v{vP+4}, v{vP}, v{vP+1}")
        a(f"v_mov_b32 v{vP+3}, {sTAG}"); a(f"v_mov_b32 v{vP+5}, {sTAG}")
        for mod in ROWRED[:3]: a(f"v_add_f32_dpp v{vP+4}, v{vP+4}, v{vP+4} {mod} {DPPF}")
        a(f"s_cmp_lg_u32 {sWAVE}, 0"); a("s_cbranch_scc1 L_side_x")
        a("s_mov_b64 exec, 1")
        a(f"buffer_store_dwordx4 {V(vP+2,4)}, v{vT+1}, {S(rWS)}, {sT1} offen sc1")
        a("s_mov_b64 exec, -1")
        a.label("L_side_x")
    W = []
    def plain(lines, cost=1):
        for l in lines: W.append((cost, None, (lambda k, l=l: a(l))))
    def capture(fn):
        keep = a.lines; a.lines = []; fn(); out = a.lines; a.lines = keep; return out
    W.append((12, None, lambda k: q_get()))
    for n in range(NSTEP):
        j = n & 15
        def kstep(k, j=j):
            a(f"v_dot2_f32_bf16 v{vP+j}, v{k}, v{vQ}, 0")
            for r in range(1, 4): a(f"v_dot2_f32_bf16 v{vP+j}, v{k+r}, v{vQ+r}, v{vP+j}")
        W.append((6, n, kstep))
        if j == 15 or n == NSTEP - 1:
            g = n >> 4
            def red():
                for j in range(8): a(f"v_add_f32_dpp v{vP+j}, v{vP+j}, v{vP+j} row_ror:8 row_mask:0xf bank_mask:0x3")
                if n & 15 >= 8:
                    for j in range(8): a(f"v_add_f32_dpp v{vP+j}, v{vP+j+8}, v{vP+j+8} row_ror:8 row_mask:0xf bank_mask:0xc")
                for j in range(4): a(f"v_add_f32_dpp v{vP+j}, v{vP+j}, v{vP+j} row_shl:4 row_mask:0xf bank_mask:0x5")
                for j in range(4): a(f"v_add_f32_dpp v{vP+j}, v{vP+j+4}, v{vP+j+4} row_shr:4 row_mask:0xf bank_mask:0xa")
                for mod in ("quad_perm:[2,3,0,1]", "quad_perm:[1,0,3,2]"):
                    for j in range(4): a(f"v_add_f32_dpp v{vP+j}, v{vP+j}, v{vP+j} {mod} {DPPF}")
                a(f"v_cndmask_b32 v{vP}, v{vP}, v{vP+1}, {sM0}")
                a(f"v_cndmask_b32 v{vP}, v{vP}, v{vP+2}, {sM1}")
                a(f"v_cndmask_b32 v{vP}, v{vP}, v{vP+3}, {sM2}")
                bf16r(f"v{vP}", f"v{vP}")
                a(f"v_mul_f32 v{vP}, {sT3}, v{vP}")
                bf16r(f"v{vSC+g}", f"v{vP}")
            plain(capture(red))
    W.append((1, None, lambda k: stamp(2)))
    def soft():
        a(f"s_sub_u32 {sT0}, {sND}, {sWAVE}"); a(f"s_sub_u32 {sT0}, {sT0}, {16*(NG-1)*8}")
        a(f"v_lshlrev_b32 v{vT}, 3, v{vC}"); a(f"v_cmp_gt_u32 vcc, {sT0}, v{vT}"); a(f"v_mov_b32 v{vT}, 0xff800000")
        a(f"v_cndmask_b32 v{vSC+NG-1}, v{vT}, v{vSC+NG-1}, vcc")
        a(f"v_max3_f32 v{vMX}, v{vSC}, v{vSC+1}, v{vSC+2}")
        a(f"v_max3_f32 v{vMX}, v{vMX}, v{vSC+3}, v{vSC+4}"); a(f"v_max_f32 v{vMX}, v{vMX}, v{vSC+5}")
        wave_reduce("v_max_f32", [vMX], [vT])
        a(f"s_mov_b32 {sT3}, {f32(LOG2E)}")
        for i in range(NG): a(f"v_sub_f32 v{vSC+i}, v{vSC+i}, v{vMX}")
        for i in range(NG): a(f"v_mul_f32 v{vSC+i}, {sT3}, v{vSC+i}")
        for i in range(NG): a(f"v_exp_f32 v{vSC+i}, v{vSC+i}")
        a(f"v_add_f32 v{vL}, v{vSC}, v{vSC+1}")
        for i in range(2, NG): a(f"v_add_f32 v{vL}, v{vL}, v{vSC+i}")
        for i in range(NG): a(f"v_cvt_pk_bf16_f32 v{vSC+i}, v{vSC+i}, v{vSC+i}")
        wave_reduce("v_add_f32", [vL], [vT])
        a(f"s_lshl_b32 {sT0}, {sWAVE}, 3"); a(f"v_mov_b32 v{vT}, {sT0}")
        a(f"ds_write_b64 v{vT}, {V(vMX,2)} offset:{L_ST}")
        a(f"v_lshlrev_b32 v{vT}, 5, v{vC}"); a(f"v_lshl_add_u32 v{vT}, v{vG}, 4, v{vT}")
        a(f"s_lshl_b32 {sT0}, {sWAVE}, 9"); a(f"v_add_u32 v{vT}, {sT0}, v{vT}")
        a(f"v_mov_b32 v{vT+3}, 1")
        a(f"v_and_b32 v{vFW+1}, 7, v{vLANE}"); a(f"v_lshlrev_b32 v{vFW+1}, 3, v{vFW+1}")
        a(f"s_lshl_b32 {sT0}, {sREC}, 9")
        a(f"s_lshl_b32 {sT1}, {sROW}, 2"); a(f"s_add_u32 {sT1}, {sT1}, {sS}"); a(f"s_lshl_b32 {sT1}, {sT1}, 4"); a(f"s_add_u32 {sT1}, {sT1}, {OFF_ST}")
    plain(capture(soft))
    for n in range(NSTEP):
        if n == SIDEAT and not noside: W.append((BUD, None, lambda k: side()))
        def bop(n):
            bo = vBOP + 4 * (n & 1)
            for r in range(4): a(f"v_and_b32_dpp v{bo+r}, v{vSC+(n>>4)}, v{vMASK+r} row_newbcast:{n&15} {DPPF}")
        if n == 0: W.append((4, None, lambda k: bop(0)))
        def vstep(k, n=n):
            bo = vBOP + 4 * (n & 1)
            a(f"v_mfma_f32_16x16x32_bf16 {V(vACC,4)}, {V(bo,4)}, {V(k,4)}, {V(vACC,4) if n else 0}")
            if n + 1 < NSTEP: bop(n + 1)
        W.append((6, NSTEP + n, vstep))
    if strip >= 1:
        W = [(c, n, (lambda k: None)) if (n is not None) else (c, n, f) for (c, n, f) in W]
    if strip >= 2:
        W = [(c, n, f) for (c, n, f) in W if n is not None]
        W.append((1, None, lambda k: [a(l) for l in capture(soft)]))
    NL = 2 * NSTEP
    free = list(range(R)); slot_of = {}
    issued = 0; known = 0; wi = 0
    def depth(i):
        if DPAT and i < NL - NEND: return DPAT[i % len(DPAT)]
        if i < QSTART: return DP
        if i >= NL - NEND: return DE
        return DK if i < NSTEP else DV
    def run_work(budget, force_need=False):
        nonlocal wi, known
        while wi < len(W) and budget > 0:
            cost, need, fn = W[wi]
            if need is not None:
                if need >= issued: return
                if need >= known:
                    if not force_need: return
                    a(f"s_waitcnt vmcnt({issued-1-need})"); known = need + 1
                fn(vRING + 4 * slot_of[need]); free.append(slot_of.pop(need))
            else:
                fn(None)
            budget -= cost; wi += 1
    while issued < NL:
        d = depth(issued)
        if not free: run_work(1, True)
        while not free: run_work(1, True)
        if issued >= d:
            a(f"s_waitcnt vmcnt({d-1})"); known = max(known, issued - d + 1)
        if issued == NSTEP:
            a(f"s_mov_b32 s{rKV}, s{sVB}"); a(f"s_mov_b32 s{rKV+1}, s{sVB+1}"); a(f"s_mov_b32 {sOFF}, 0")
        sl = free.pop(0); slot_of[issued] = sl
        a(f"buffer_load_dwordx4 {V(vRING+4*sl,4)}, v{vOFF}, {S(rKV)}, {sOFF} offen {kvpol}")
        a(f"s_add_u32 {sOFF}, {sOFF}, {sSTEP}")
        issued += 1
        if issued == DP: setup()
        if issued == QAT and strip < 2: q_issue()
        if issued == QAT + DP + 1 and strip < 2: q_take()
        if issued >= QSTART: run_work(BUD)
    run_work(1 << 30, True)
    assert wi == len(W)
    a(f"v_pk_mul_f32 {V(vACC,2)}, {V(vACC,2)}, {V(vFW,2)} op_sel_hi:[1,0]")
    a(f"v_pk_mul_f32 {V(vACC+2,2)}, {V(vACC+2,2)}, {V(vFW,2)} op_sel_hi:[1,0]")
    a("s_mov_b64 exec, 0xffffffff")
    a(f"ds_write_b128 v{vT}, {V(vACC,4)} offset:{L_OP}")
    a("s_mov_b64 exec, 1")
    a(f"ds_add_rtn_u32 v{vT+3}, v{vT+1}, v{vT+3} offset:{L_CNT}")
    a("s_mov_b64 exec, -1")
    for w in range(4): a(f"ds_read_b128 {V(vP+4*w,4)}, v{vT+2} offset:{L_OP+1024*w}")
    a(f"v_and_b32 v{vBOP}, 0x1ff, v{vT+2}"); a(f"v_lshrrev_b32 v{vBOP+1}, 5, v{vLANE}"); a(f"v_lshl_add_u32 v{vBOP}, v{vBOP+1}, 3, v{vBOP}")
    stamp(3)
    if est:
        for idx, sr_ in ((14, 96), (15, 100)):
            a("s_lshl_b32 s86, s2, 3"); a(f"s_add_u32 s86, s86, {sWAVE}"); a("s_lshl_b32 s86, s86, 7"); a(f"s_add_u32 s86, s86, {OFF_TS + idx*8}")
            a("s_mov_b64 exec, 1")
            a(f"v_mov_b32 v60, s{sr_}"); a(f"v_mov_b32 v61, s{sr_+1}"); a("v_mov_b32 v62, 0")
            a(f"buffer_store_dwordx2 v[60:61], v62, {S(rWS)}, s86 offen")
            a("s_mov_b64 exec, -1")
    a("s_waitcnt lgkmcnt(4)")
    a(f"v_readfirstlane_b32 {sT2}, v{vT+3}")
    a(f"s_cmp_lg_u32 {sT2}, 7"); a("s_cbranch_scc1 L_stail")
    a("s_waitcnt lgkmcnt(2)")
    a(f"v_pk_add_f32 {V(vP,2)}, {V(vP,2)}, {V(vP+4,2)}"); a(f"v_pk_add_f32 {V(vP+2,2)}, {V(vP+2,2)}, {V(vP+6,2)}")
    a("s_waitcnt lgkmcnt(0)")
    a(f"v_pk_add_f32 {V(vP+8,2)}, {V(vP+8,2)}, {V(vP+12,2)}"); a(f"v_pk_add_f32 {V(vP+10,2)}, {V(vP+10,2)}, {V(vP+14,2)}")
    a(f"v_pk_add_f32 {V(vP,2)}, {V(vP,2)}, {V(vP+8,2)}"); a(f"v_pk_add_f32 {V(vP+2,2)}, {V(vP+2,2)}, {V(vP+10,2)}")
    a(f"v_permlane32_swap_b32 v{vP}, v{vP+2}"); a(f"v_permlane32_swap_b32 v{vP+1}, v{vP+3}")
    a(f"v_pk_add_f32 {V(vP,2)}, {V(vP,2)}, {V(vP+2,2)}")
    settag(vP, vP); settag(vP + 1, vP + 1)
    a(f"buffer_store_dwordx2 {V(vP,2)}, v{vBOP}, {S(rWS)}, {sT0} offen sc1")
    stamp(4)
    a.label("L_stail")
    a("s_waitcnt lgkmcnt(0)")
    a(f"s_cmp_ge_u32 s15, {0 if norole else 40}"); a("s_cbranch_scc1 L_exit")
    oA = 8; oY = 16; oZ = 20; oX = 24; oT = 28
    a(f"s_lshl_b32 {sT1}, s15, 5"); a(f"s_lshl_b32 {sT0}, {sWAVE}, 2"); a(f"s_add_u32 {sT1}, {sT1}, {sT0}")
    a(f"v_and_b32 v{oT}, 1, v{vG}"); a(f"v_and_b32 v{oT+1}, 2, v{vG}")
    a(f"v_mul_u32_u24 v{oA}, 1280, v{oT}"); a(f"v_add_u32 v{oA}, v{oA}, v{oT+1}")
    a(f"buffer_load_ushort v{oX}, v{oA}, {S(rX)}, {sT1} offen")
    a(f"s_lshl_b32 {sT0}, s15, 7"); a(f"s_lshl_b32 {sT2}, {sWAVE}, 3"); a(f"s_add_u32 {sOFF}, {sT0}, {sT2}"); a(f"s_add_u32 {sCNT}, {sOFF}, {sT2}")
    a(f"s_add_u32 {sOFF}, {sOFF}, {OFF_YP}"); a(f"s_add_u32 {sCNT}, {sCNT}, {OFF_ZP}")
    a(f"v_and_b32 v{oA+1}, 3, v{vLANE}"); a(f"v_mul_u32_u24 v{oA+1}, 5120, v{oA+1}")
    a(f"v_lshl_add_u32 v{oA+1}, v{oT}, 6, v{oA+1}"); a(f"v_lshl_add_u32 v{oA+1}, v{oT+1}, 1, v{oA+1}")
    a(f"v_mul_u32_u24 v{oA+2}, 5120, v{vLANE}")
    a(f"v_cmp_gt_u32 {sM0}, 27, v{vLANE}")
    a(f"v_cmp_eq_u32 {sM1}, 0, v{vC}")
    for r in range(4): a(f"v_mov_b32 v{oZ+r}, 0")
    def y_body():
        a("s_waitcnt vmcnt(0)")
        chktag([oY], oT)
    poll("L_O_poll1", [f"buffer_load_dword v{oY}, v{oA+1}, {S(rWS)}, {sOFF} offen sc1"], y_body, sleep=gsleep)
    for mod in ROWRED[:2]: a(f"v_add_f32_dpp v{oY}, v{oY}, v{oY} {mod} {DPPF}")
    a(f"v_lshlrev_b32 v{oX}, 16, v{oX}")
    bf16r(f"v{oY}", f"v{oY}")
    a(f"v_add_f32 v{oY}, v{oX}, v{oY}")
    bf16r(f"v{oY}", f"v{oY}")
    stamp(5)
    exset(sM0)
    def z_body():
        a("s_waitcnt vmcnt(0)")
        chktag(range(oZ, oZ + 4), oT, oT + 1)
    poll("L_O_poll2", [f"buffer_load_dwordx4 {V(oZ,4)}, v{oA+2}, {S(rWS)}, {sCNT} offen sc1"], z_body, sleep=osleep)
    exfull()
    stamp(6)
    a(f"v_permlane16_swap_b32 v{oZ}, v{oZ+1}"); a(f"v_permlane16_swap_b32 v{oZ+2}, v{oZ+3}")
    a(f"v_add_f32 v{oZ}, v{oZ}, v{oZ+1}"); a(f"v_add_f32 v{oZ+2}, v{oZ+2}, v{oZ+3}")
    a(f"v_permlane32_swap_b32 v{oZ}, v{oZ+2}")
    a(f"v_add_f32 v{oZ}, v{oZ}, v{oZ+2}")
    for mod in ROWRED: a(f"v_add_f32_dpp v{oZ}, v{oZ}, v{oZ} {mod} {DPPF}")
    bf16r(f"v{oZ}", f"v{oZ}")
    a(f"v_add_f32 v{oZ}, v{oY}, v{oZ}")
    a(f"v_cvt_pk_bf16_f32 v{oZ}, v{oZ}, v{oZ}")
    exset(sM1)
    a(f"buffer_store_short v{oZ}, v{oA}, {S(rOUT)}, {sT1} offen {opol}")
    exfull()
    stamp(7)
    a("s_branch L_exit")


    a.label("L_service")
    if nosvc: stamp(0); a("s_branch L_exit")
    hX = 10; hC = 30; hT = 32; hSEL = 40; hACC = 44; hAOP = 48; hW = 64
    stamp(0)
    srd(rX, pX, 2560)
    a(f"v_mov_b32 v{vFF}, 0xff")
    a(f"s_mov_b32 {sSI}, s2"); a(f"s_mov_b32 {sLW}, {L_W}"); a(f"s_movk_i32 {sC1280}, 1280")
    a(f"v_mul_u32_u24 v8, 40, v{vLANE}")
    for i in range(5): a(f"buffer_load_dwordx2 {V(hX+4*i,2)}, v8, {S(rX)}, 0 offen offset:{8*i}")
    a(f"s_and_b32 {sT0}, {sSI}, 1"); a(f"s_mul_i32 {sT0}, {sT0}, 320"); a(f"s_mul_i32 {sT1}, {sWAVE}, 40"); a(f"s_add_u32 {sT0}, {sT0}, {sT1}")
    a(f"v_lshl_add_u32 v9, v{vC}, 2, v{vG}"); a("v_lshlrev_b32 v9, 1, v9")
    a(f"s_lshl_b32 {sT1}, {sT0}, 1")
    a(f"buffer_load_ushort v{hC}, v9, {S(rX)}, {sT1} offen"); a(f"buffer_load_ushort v{hC+1}, v9, {S(rX)}, {sT1} offen offset:1280")
    a(f"s_lshr_b32 {sT1}, {sSI}, 1"); a(f"s_lshl_b32 {sT1}, {sT1}, 8")
    srd(rA, pWQ, 640 * 8192 - 31 * 256, sT1)
    a(f"v_lshlrev_b32 v8, 13, v{vG}"); a(f"v_lshl_add_u32 v8, v{vC}, 4, v8")
    a(f"s_lshl_b32 {sOFF}, {sT0}, 13"); a(f"s_mov_b32 {sSTEP}, 32768")
    for n in range(10):
        a(f"buffer_load_dwordx4 {V(hW+4*n,4)}, v8, {S(rA)}, {sOFF} offen {wqpol}")
        a(f"s_add_u32 {sOFF}, {sOFF}, {sSTEP}")
    a(f"v_lshrrev_b32 v8, 3, v{vC}"); a("v_mul_u32_u24 v8, 0x0202, v8"); a("v_add_u32 v8, 0x0100, v8")
    a("v_or_b32 v9, 0x0c0c0000, v8"); a("v_lshlrev_b32 v8, 16, v8"); a("v_or_b32 v8, 0x0c0c, v8")
    a(f"v_and_b32 v57, 1, v{vC}"); a("v_cmp_eq_u32 vcc, 1, v57"); a("v_cndmask_b32 v8, v9, v8, vcc")
    a(f"v_bfe_u32 v9, v{vC}, 1, 2"); a("v_mov_b32 v57, 0x0c0c0c0c")
    for r in range(4):
        a(f"v_cmp_eq_u32 vcc, {r}, v9"); a(f"v_cndmask_b32 v{hSEL+r}, v57, v8, vcc")
    a("s_waitcnt vmcnt(10) lgkmcnt(0)")
    mktag(56)
    for i in range(5):
        b_ = hX + 4 * i
        a(f"v_and_b32 v{b_+3}, 0xffff0000, v{b_+1}"); a(f"v_lshlrev_b32 v{b_+2}, 16, v{b_+1}")
        a(f"v_and_b32 v{b_+1}, 0xffff0000, v{b_}"); a(f"v_lshlrev_b32 v{b_}, 16, v{b_}")
    a(f"v_pk_add_f32 {V(hT,2)}, {V(hX,2)}, {V(hX+2,2)}")
    for i in range(4, 20, 2): a(f"v_pk_add_f32 {V(hT,2)}, {V(hT,2)}, {V(hX+i,2)}")
    a(f"v_add_f32 v{hT}, v{hT}, v{hT+1}")
    wave_reduce("v_add_f32", [hT], [hT + 1], half=True)
    a(f"v_mul_f32 v{hT}, {f32(1/640)}, v{hT}")
    for i in range(0, 20, 2): a(f"v_pk_add_f32 {V(hX+i,2)}, {V(hX+i,2)}, {V(hT,2)} op_sel_hi:[1,0] neg_lo:[0,1] neg_hi:[0,1]")
    a(f"v_pk_mul_f32 {V(hT+2,2)}, {V(hX,2)}, {V(hX,2)}")
    for i in range(2, 20, 2): a(f"v_pk_fma_f32 {V(hT+2,2)}, {V(hX+i,2)}, {V(hX+i,2)}, {V(hT+2,2)}")
    a(f"v_add_f32 v{hT+2}, v{hT+2}, v{hT+3}")
    wave_reduce("v_add_f32", [hT + 2], [hT + 1], half=True)
    a(f"v_mul_f32 v{hT+2}, {f32(1/640)}, v{hT+2}")
    for l in ln_finish_l(hT, hT + 2, hT + 4): a(l)
    for r in (hT, hT + 2, hT + 4): a(f"v_mov_b32 v{r+1}, v{r}")
    for r in (hT, hT + 2, hT + 4): a(f"v_permlane32_swap_b32 v{r}, v{r+1}")
    for b in range(2): a(f"v_lshlrev_b32 v{hC+b}, 16, v{hC+b}")
    for b in range(2): a(f"v_sub_f32 v{hC+b}, v{hC+b}, v{hT+b}")
    for b in range(2): bf16r(f"v{hC+b}", f"v{hC+b}")
    for b in range(2): a(f"v_mul_f32 v{hT+6+b}, v{hC+b}, v{hT+4+b}")
    for b in range(2): a(f"v_fma_f32 v{hC+b}, -v{hT+6+b}, v{hT+2+b}, v{hC+b}")
    for b in range(2): a(f"v_fma_f32 v{hC+b}, v{hC+b}, v{hT+4+b}, v{hT+6+b}")
    a(f"v_cvt_pk_bf16_f32 v{hC}, v{hC}, v{hC+1}")
    for n in range(10):
        bo = hAOP + 4 * (n & 1)
        a(f"v_mov_b32_dpp v{hC+1}, v{hC} row_newbcast:{n} {DPPF}")
        for r in range(4): a(f"v_perm_b32 v{bo+r}, v{hC+1}, v{hC+1}, v{hSEL+r}")
        a(f"s_waitcnt vmcnt({9-n})")
        a(f"v_mfma_f32_16x16x32_bf16 {V(hACC,4)}, {V(bo,4)}, {V(hW+4*n,4)}, {V(hACC,4) if n else 0}")
    a("v_lshlrev_b32 v8, 4, v0")
    a(f"ds_write_b128 v8, {V(hACC,4)} offset:{L_W}")
    a("s_waitcnt lgkmcnt(0)")
    a("s_barrier")
    a(f"s_cmp_lg_u32 {sWAVE}, 0"); a("s_cbranch_scc1 L_s_nopub")
    for w in range(8): a(f"ds_read_b128 {V(hW+4*w,4)}, v8 offset:{L_W+1024*w}")
    a(f"s_lshl_b32 {sT0}, {sSI}, 10"); a(f"s_add_u32 {sT0}, {sT0}, {OFF_QP}")
    a("s_waitcnt lgkmcnt(0)")
    for st_ in (4, 8, 16):
        for b_ in range(0, 32, 2 * st_):
            for e in (0, 2): a(f"v_pk_add_f32 {V(hW+b_+e,2)}, {V(hW+b_+e,2)}, {V(hW+b_+st_+e,2)}")
    for r in range(4): a(f"v_add_u32 v{hW+r}, 8, v{hW+r}")
    for r in range(4): a(f"v_bfi_b32 v{hW+r}, 15, {sTAG}, v{hW+r}")
    a(f"buffer_store_dwordx4 {V(hW,4)}, v8, {S(rWS)}, {sT0} offen sc1")
    a.label("L_s_nopub")
    stamp(1)
    if norole: a("s_branch L_exit")
    a("s_barrier")
    tF = 192; tO = [132, 136, 140, 144]; tR = [148, 152, 184]
    fGU = 64; fD = 144; fB = 184; fY = 184; fS = 240; fX = 48; fT = 36; fA = 8; fZ = 16; fAD = 42
    tA = 54; tS = 24; tM = 32; tAC = 20
    vPW, vTR, vGW, vGR = 4, 5, 6, 7
    sYP, sOPO, sSTO, sDBL, sSH = "s4", "s5", "s6", "s8", "s61"
    tF2 = 64; tAC2 = 128
    a("v_lshlrev_b32 v8, 2, v0"); a("v_mov_b32 v9, 0x3f803f80"); a("v_mov_b32 v10, 0")
    a(f"ds_write_b32 v8, v10 offset:{L_SP}")
    a("v_mov_b32 v9, -1"); a("v_cmp_gt_u32 vcc, 256, v0"); a("s_and_b64 exec, exec, vcc")
    a(f"ds_write_b32 v8, v9 offset:{L_XS}")
    a("v_cmp_gt_u32 vcc, 128, v0"); a("s_and_b64 exec, exec, vcc")
    a(f"ds_write_b32 v8, v10 offset:{L_AC}")
    a("s_mov_b64 exec, -1")
    def dma_loop(lbl, srdr, voff, sstep, mstep, n, dd):
        a(f"s_mov_b32 {sCNT}, {n}")
        a.label(lbl)
        if not nodma: a(f"buffer_load_dwordx4 v{voff}, {S(srdr)}, {sOFF} offen {wpol} lds")
        a(f"s_add_u32 {sOFF}, {sOFF}, {sstep}"); a(f"s_add_u32 m0, m0, {mstep}")
        if dd < 31: a(f"s_waitcnt vmcnt({dd})")
        a(f"s_sub_u32 {sCNT}, {sCNT}, 1"); a(f"s_cmp_lg_u32 {sCNT}, 0"); a(f"s_cbranch_scc1 {lbl}")
    a(f"s_sub_u32 {sRI}, {sSI}, 27"); a(f"s_mov_b32 {sFI}, {sSI}")
    a(f"s_lshr_b32 {sT2}, {sWAVE}, 1"); a(f"s_and_b32 {sT2}, {sT2}, 1"); a(f"s_lshl_b32 {sT2}, {sT2}, 3")
    a(f"v_lshlrev_b32 v9, 1, v{vG}"); a(f"v_or_b32 v9, {sT2}, v9"); a(f"v_xor_b32 v9, v9, v{vC}")
    a(f"v_lshlrev_b32 v9, 4, v9"); a(f"v_mul_u32_u24 v{vPW}, 1280, v{vG}"); a(f"v_add_u32 v{vPW}, v{vPW}, v9")
    a(f"v_lshrrev_b32 v12, 2, v{vLANE}"); a("v_and_b32 v12, 7, v12"); a("v_lshlrev_b32 v12, 1, v12")
    a(f"v_bfe_u32 v13, v{vLANE}, 1, 1"); a("v_xor_b32 v12, v12, v13"); a("v_lshlrev_b32 v12, 4, v12")
    a(f"v_and_b32 v13, 1, v{vLANE}"); a("v_lshl_add_u32 v12, v13, 3, v12")
    a(f"v_bfe_u32 v13, v{vLANE}, 2, 2"); a(f"v_lshl_add_u32 v13, v{vG}, 3, v13")
    a(f"v_lshl_add_u32 v{vTR}, v13, 8, v12")
    a(f"s_and_b32 {sT2}, {sWAVE}, 1"); a(f"s_lshl_b32 {sT2}, {sT2}, 1"); a(f"s_and_b32 {sT3}, {sWAVE}, 4"); a(f"s_or_b32 {sT2}, {sT2}, {sT3}")
    a(f"v_and_b32 v9, 1, v{vG}"); a(f"v_or_b32 v9, {sT2}, v9"); a(f"v_and_b32 v10, 7, v{vLANE}"); a("v_xor_b32 v9, v9, v10")
    a(f"v_lshrrev_b32 v8, 3, v{vLANE}"); a("v_mul_u32_u24 v8, 3456, v8"); a(f"v_lshl_add_u32 v{vGW}, v9, 4, v8")
    a(f"v_bfe_u32 v13, v{vLANE}, 3, 2"); a(f"v_bfe_u32 v14, v{vLANE}, 1, 1"); a("v_lshl_add_u32 v13, v14, 2, v13")
    a(f"v_xor_b32 v13, {sWAVE}, v13"); a("v_lshlrev_b32 v13, 4, v13")
    a("v_mul_u32_u24 v14, 20480, v14"); a(f"v_add3_u32 v13, v13, v14, {sLW}")
    a(f"v_and_b32 v14, 1, v{vLANE}"); a("v_lshl_add_u32 v13, v14, 3, v13")
    a(f"v_bfe_u32 v14, v{vLANE}, 2, 2"); a(f"v_lshl_add_u32 v14, v{vG}, 3, v14"); a(f"v_lshl_add_u32 v{vGR}, v14, 7, v13")
    a(f"s_mul_i32 {sT0}, {sWAVE}, 5")
    a(f"v_lshrrev_b32 v{fT}, 3, v{vLANE}"); a(f"v_add_u32 v{fT}, {sT0}, v{fT}"); a(f"v_and_b32 v{fT+1}, 3, v{vLANE}")
    a(f"v_lshl_add_u32 v{fT}, v{fT}, 2, v{fT+1}"); a(f"v_lshlrev_b32 v{fT}, 3, v{fT}")
    a(f"v_bfe_u32 v{fT+1}, v{vLANE}, 2, 1")
    a(f"v_mad_u32_u24 v{fA}, v{fT+1}, {sC1280}, v{fT}")
    a(f"buffer_load_dwordx2 {V(fX,2)}, v{fA}, {S(rX)}, 0 offen")
    a(f"v_mul_u32_u24 v{fA+1}, 1344, v{fT+1}"); a(f"v_lshrrev_b32 v{fT+2}, 1, v{fT}"); a(f"v_add_u32 v{fA+1}, v{fA+1}, v{fT+2}"); a(f"v_add_u32 v{fA+1}, {L_HN}, v{fA+1}")
    a(f"v_lshrrev_b32 v{fA}, 5, v{fT}"); a(f"v_lshlrev_b32 v{fA}, 3, v{fA}"); a(f"v_lshl_add_u32 v{fA}, v{fT+1}, 9, v{fA}")
    a(f"v_lshlrev_b32 v{fA+2}, 4, v{vLANE}")
    a(f"s_mul_i32 s90, {sWAVE}, 640"); a(f"s_add_u32 s90, s90, {OFF_YP}")
    for kb in range(1, 4): a(f"s_add_u32 s{90+kb}, s90, {kb*5120}")
    a(f"v_bfe_u32 v{fA+3}, v{vC}, 2, 1"); a(f"v_and_b32 v{fT}, 1, v{vC}")
    a(f"v_mul_u32_u24 v{fA+3}, 1344, v{fA+3}"); a(f"v_lshl_add_u32 v{fA+3}, v{vG}, 4, v{fA+3}")
    a(f"v_lshrrev_b32 v{fT+1}, 3, v{vC}"); a(f"v_lshl_add_u32 v{fT+1}, v{fT}, 1, v{fT+1}"); a(f"v_mul_u32_u24 v{fT+1}, 320, v{fT+1}"); a(f"v_add_u32 v{fA+3}, v{fA+3}, v{fT+1}")
    a(f"v_and_b32 v{fA+4}, 1, v{vG}"); a(f"v_lshlrev_b32 v{fA+4}, 6, v{fA+4}"); a(f"v_lshrrev_b32 v{fT+1}, 1, v{vG}"); a(f"v_lshl_add_u32 v{fA+4}, v{fT+1}, 4, v{fA+4}")
    a(f"v_add_u32 v{fA+4}, v{fA+4}, v{vC}"); a(f"v_lshlrev_b32 v{fA+4}, 3, v{fA+4}"); a(f"v_add_u32 v{fA+4}, {L_SP}, v{fA+4}")
    a(f"v_and_b32 v{fA+5}, 1, v{vG}"); a(f"v_lshlrev_b32 v{fA+5}, 6, v{fA+5}")
    a(f"v_bfe_u32 v{fT+1}, v{vC}, 1, 1"); a(f"v_lshl_add_u32 v{fA+5}, v{fT+1}, 7, v{fA+5}")
    a(f"v_lshl_add_u32 v{fA+5}, v{fT}, 1, v{fA+5}")
    a(f"v_and_b32 v{fT+2}, 4, v{vC}"); a(f"v_add_u32 v{fA+5}, v{fA+5}, v{fT+2}")
    a(f"s_lshl_b32 {sT0}, {sWAVE}, 3"); a(f"v_add_u32 v{fA+5}, {sT0}, v{fA+5}")
    a(f"v_mov_b32 v{fT+2}, 0x4444"); a(f"v_mov_b32 v{fT+3}, 0xeeee")
    a(f"v_cmp_eq_u32 vcc, 1, v{fT+1}"); a(f"v_cndmask_b32 v{fAD+4}, v{fT+2}, v{fT+3}, vcc")
    a(f"v_cmp_eq_u32 vcc, 1, v{fT}"); a(f"v_cndmask_b32 v15, v{fT+2}, v{fT+3}, vcc")
    a(f"v_and_b32 v{fAD}, 3, v{vC}"); a(f"v_lshlrev_b32 v{fAD}, 6, v{fAD}"); a(f"v_lshl_add_u32 v{fAD}, v{vG}, 4, v{fAD}")
    a(f"s_mul_i32 s98, {sFI}, 5120"); a(f"s_mul_i32 {sT2}, {sWAVE}, 640"); a(f"s_add_u32 s98, s98, {sT2}"); a(f"s_add_u32 s98, s98, {OFF_ZP}")
    a(f"v_lshlrev_b32 v{fA+6}, 6, v{vC}"); a(f"v_lshl_add_u32 v{fA+6}, v{vG}, 4, v{fA+6}")
    a(f"v_lshlrev_b32 v{tA}, 3, v{vLANE}"); a(f"v_mov_b32 v{tA+1}, 0")
    rOP, rST, rOW, rOR, rXS, rWO, rFR = 16, 17, 18, 19, 20, 21, 22
    a(f"v_lshrrev_b32 v{fT}, 5, v{vLANE}"); a(f"v_and_b32 v{fT+1}, 31, v{vLANE}")
    a(f"v_mul_u32_u24 v{rOP}, {32*1536}, v{fT}"); a(f"v_lshl_add_u32 v{rOP}, v{fT+1}, 4, v{rOP}")
    a(f"v_lshlrev_b32 v{rST}, 11, v{fT}")
    a(f"s_lshl_b32 {sT2}, {sWAVE}, 8"); a(f"s_add_u32 {sT2}, {sT2}, {L_OB}")
    a(f"v_mul_u32_u24 v{rOW}, 2112, v{fT}"); a(f"v_lshl_add_u32 v{rOW}, v{fT+1}, 2, v{rOW}"); a(f"v_add_u32 v{rOW}, {sT2}, v{rOW}")
    a(f"v_bfe_u32 v{rOR}, v{vC}, 2, 1"); a(f"v_mul_u32_u24 v{rOR}, 2112, v{rOR}"); a(f"v_lshl_add_u32 v{rOR}, v{vG}, 4, v{rOR}")
    a(f"v_and_b32 v{fT}, 1, v{vC}"); a(f"v_lshl_add_u32 v{rOR}, v{fT}, 7, v{rOR}")
    a(f"v_lshrrev_b32 v{fT}, 3, v{vC}"); a(f"v_lshl_add_u32 v{rOR}, v{fT}, 6, v{rOR}")
    a(f"s_lshr_b32 {sT2}, {sWAVE}, 2"); a(f"s_lshl_b32 {sT3}, {sT2}, 10"); a(f"v_add_u32 v{rOR}, {sT3}, v{rOR}")
    a(f"v_lshlrev_b32 v{tA+4}, 2, v{vLANE}")
    a(f"s_and_b32 {sT3}, {sWAVE}, 3"); a(f"s_lshl_b32 {sT0}, {sT3}, 7"); a(f"v_add_u32 v{rXS}, {sT0}, v{tA+4}")
    a(f"v_bfe_u32 v{rFR}, v{vLANE}, 3, 2"); a(f"v_xor_b32 v{rFR}, {sT3}, v{rFR}"); a(f"v_lshlrev_b32 v{rFR}, 5, v{rFR}")
    a(f"v_and_b32 v{fT}, 3, v{vLANE}"); a(f"v_lshl_add_u32 v{rFR}, v{fT}, 3, v{rFR}")
    a(f"v_bfe_u32 v{fT}, v{vLANE}, 2, 2"); a(f"v_lshl_add_u32 v{fT}, v{vG}, 3, v{fT}"); a(f"v_lshl_add_u32 v{rFR}, v{fT}, 7, v{rFR}")
    a(f"s_lshl_b32 {sT2}, {sT2}, 16"); a(f"s_add_u32 {sT2}, {sT2}, {L_W}"); a(f"v_add_u32 v{rFR}, {sT2}, v{rFR}")
    a(f"s_and_b32 {sT2}, {sWAVE}, 1"); a(f"s_lshl_b32 {sT2}, {sT2}, 2")
    a(f"v_and_b32 v{rWO}, 1, v{vG}"); a(f"v_lshlrev_b32 v{rWO}, 1, v{rWO}"); a(f"v_or_b32 v{rWO}, {sT2}, v{rWO}")
    a(f"v_and_b32 v{fT}, 7, v{vLANE}"); a(f"v_xor_b32 v{rWO}, v{rWO}, v{fT}"); a(f"v_lshlrev_b32 v{rWO}, 4, v{rWO}")
    a(f"v_lshrrev_b32 v{fT}, 3, v{vLANE}"); a(f"v_mul_u32_u24 v{fT}, 1280, v{fT}"); a(f"v_add_u32 v{rWO}, v{rWO}, v{fT}")
    a(f"v_lshlrev_b32 v{tA+5}, 6, v{vLANE}")
    a(f"s_lshl_b32 {sT2}, 1, {sWAVE}"); a(f"v_mov_b32 v52, {sT2}")
    a(f"s_min_u32 {sT2}, {sRI}, 63")
    a(f"s_mul_i32 {sT0}, {sT2}, 57"); a(f"s_lshr_b32 {sT0}, {sT0}, 9"); a(f"s_min_u32 {sT0}, {sT0}, 3")
    a(f"s_mul_i32 {sT1}, {sT0}, 9"); a(f"s_sub_u32 {sT1}, {sT2}, {sT1}")
    a(f"s_cmp_lt_u32 {sRI}, 27"); a(f"s_cselect_b32 {sT3}, {sT1}, 0")
    a(f"s_cmp_eq_u32 {sT3}, 8"); a(f"s_cselect_b32 {sDBL}, 1, 0")
    a(f"s_lshl_b32 {sT2}, {sT0}, 4"); a(f"s_add_u32 {sT2}, {sT2}, {sWAVE}"); a(f"s_mul_i32 s9, {sT2}, {8*1280}")
    a(f"s_lshl_b32 {sT2}, {sT1}, 7"); a(f"s_add_u32 s9, s9, {sT2}")
    a(f"s_lshl_b32 {sT2}, {sWAVE}, 2"); a(f"s_add_u32 {sT2}, {sT2}, {sT0}")
    a(f"s_mul_i32 {sOPO}, {sT2}, 1536")
    a(f"s_lshl_b32 {sSTO}, {sT2}, 6"); a(f"s_add_u32 {sSTO}, {sSTO}, {OFF_ST}")
    a(f"s_mul_i32 {sYP}, {sT0}, 5120"); a(f"s_lshl_b32 {sT1}, {sT1}, 9"); a(f"s_add_u32 {sYP}, {sYP}, {sT1}"); a(f"s_add_u32 {sYP}, {sYP}, {OFF_YP}")
    a(f"s_and_b32 {sT1}, {sWAVE}, 3"); a(f"s_lshl_b32 {sT1}, {sT1}, 7"); a(f"s_add_u32 {sYP}, {sYP}, {sT1}")
    a(f"s_and_b32 {sSH}, {sWAVE}, 4")
    a("s_waitcnt vmcnt(0)")
    a(f"v_and_b32 v{fX+3}, 0xffff0000, v{fX+1}"); a(f"v_lshlrev_b32 v{fX+2}, 16, v{fX+1}")
    a(f"v_and_b32 v{fX+1}, 0xffff0000, v{fX}"); a(f"v_lshlrev_b32 v{fX}, 16, v{fX}")
    def stage_ffn(tag, dd):
        fG2 = 232
        srd(rA, pWG, 640 * 3456); srd(rKV, pWD, 1728 * 1280)
        a(f"s_cmp_ge_u32 {sWAVE}, 4"); a(f"s_cselect_b32 s{rA}, s{pWU}, s{rA}"); a(f"s_cselect_b32 s{rA+1}, s{pWU+1}, s{rA+1}")
        a(f"s_and_b32 {sT0}, {sWAVE}, 3")
        a(f"s_mul_i32 {sOFF}, {sT0}, {8*3456}"); a(f"s_lshl_b32 {sT1}, {sFI}, 7"); a(f"s_add_u32 {sOFF}, {sOFF}, {sT1}")
        a(f"s_lshl_b32 {sT0}, {sT0}, 10"); a(f"s_lshr_b32 {sT1}, {sWAVE}, 2"); a(f"s_mul_i32 {sT1}, {sT1}, 20480"); a(f"s_add_u32 {sT0}, {sT0}, {sT1}")
        a(f"s_mul_i32 {sCNT}, {sFI}, {64*1280}"); a(f"s_mul_i32 {sT1}, {sWAVE}, 5120"); a(f"s_add_u32 {sCNT}, {sCNT}, {sT1}")
        a(f"s_lshl_b32 {sT1}, {sWAVE}, 10")
        def issue(c):
            base = L_W + (c % 3) * 40960
            for u in range(5):
                if c < 4:
                    a(f"s_add_u32 m0, {sT0}, {base + u*4096}")
                    a(f"buffer_load_dwordx4 v{vGW}, {S(rA)}, {sOFF} offen {wpol} lds")
                    a(f"s_add_u32 {sOFF}, {sOFF}, {32*3456}")
                else:
                    a(f"s_add_u32 m0, {sT1}, {base + u*8192}")
                    a(f"buffer_load_dwordx4 v{vPW}, {S(rKV)}, {sCNT} offen {wpol} lds")
                    a(f"s_add_u32 {sCNT}, {sCNT}, {256 if u < 4 else 32*1280 - 1024}")
        for c in range(3): issue(c)
        for i in range(5):
            a(f"s_mul_i32 {sT2}, {sWAVE}, 5"); a(f"s_add_u32 {sT2}, {sT2}, {i}")
            a(f"s_and_b32 {sT3}, {sT2}, 7"); a(f"s_lshl_b32 {sT3}, {sT3}, 5")
            a(f"v_xor_b32 v{fG2+i}, {sT3}, v{vTR}")
            a(f"s_lshr_b32 {sT2}, {sT2}, 3"); a(f"s_lshl_b32 {sT2}, {sT2}, 13"); a(f"s_add_u32 {sT2}, {sT2}, {L_W+40960}")
            a(f"v_add_u32 v{fG2+i}, {sT2}, v{fG2+i}")
        a(f"v_add_u32 v{fG2+5}, 81920, v{vGR}")
        for r in range(4): a(f"v_mov_b32 v{fG2+8+r}, 0x3f803f80")
        for c in range(6):
            a(f"s_waitcnt vmcnt({5*min(2, 5-c) + (4 if (early and c >= 3) else 0)})")
            a("s_barrier")
            if c < 4:
                for k in range(5):
                    for hh in range(2):
                        sl = c % 3
                        a(f"ds_read_b64_tr_b16 {V(fGU+4*(5*c+k)+2*hh,2)}, v{vGR if sl < 2 else fG2+5} offset:{(40960 if sl == 1 else 0)+k*4096+hh*512}")
            else:
                for i in range(5):
                    for hh in range(2):
                        a(f"ds_read_b64_tr_b16 {V(fD+8*i+4*(c-4)+2*hh,2)}, v{fG2+i} offset:{(c-4)*40960+hh*1024}")
            if c + 3 < 6:
                a("s_waitcnt lgkmcnt(0)")
                a("s_barrier")
                issue(c + 3)
                if early and c == 2:
                    a(f"v_cmp_gt_u32 vcc, 40, v{vLANE}"); a("s_mov_b64 exec, vcc")
                    for kb in range(4): a(f"buffer_load_dwordx4 {V(fY+4*kb,4)}, v{fA+2}, {S(rWS)}, s{90+kb} offen sc1")
                    a("s_mov_b64 exec, -1")
            if c < 4:
                a("s_waitcnt lgkmcnt(0)")
                for k in range(5):
                    a(f"v_mfma_f32_16x16x32_bf16 {V(fG2+12,4)}, {V(fG2+8,4)}, {V(fGU+4*(5*c+k),4)}, {V(fG2+12,4) if 5*c+k else 0}")
        a(f"v_mov_b32 v47, v{fG2+12}")
        a("s_waitcnt lgkmcnt(0)")
    def wo_issue(extra):
        srd(rA, pWO, 4096 * 1280)
        a(f"s_add_u32 {sOFF}, s9, {extra}")
        a(f"s_lshl_b32 {sT1}, {sWAVE}, 10"); a(f"s_add_u32 m0, {sT1}, {L_W}")
        for u in range(16):
            a(f"buffer_load_dwordx4 v{rWO}, {S(rA)}, {sOFF} offen {wpol} lds")
            a(f"s_add_u32 {sOFF}, {sOFF}, {(64 if u % 2 == 0 else 448)*1280}"); a("s_add_u32 m0, m0, 8192")
    def wo_frags(dst):
        for ks in range(16):
            for hh in range(2):
                a(f"ds_read_b64_tr_b16 {V(dst+4*ks+2*hh,2)}, v{rFR} offset:{ks*4096+hh*512}")
    a(f"s_cmp_eq_u32 {sDBL}, 0"); a("s_cbranch_scc1 L_s_e1")
    wo_issue(128)
    a("s_waitcnt vmcnt(0)")
    a("s_barrier")
    wo_frags(tF2)
    a.label("L_s_e1")
    stamp(2)
    if fst:
        a("s_memtime s[100:101]"); a("s_memrealtime s[70:71]"); a("s_waitcnt lgkmcnt(0)")
    a("s_waitcnt lgkmcnt(0)")
    a("s_barrier")
    if dry:
        a(f"s_mov_b32 {sDRY}, 2"); a(f"s_mov_b64 {sFULL}, 0"); a("s_mov_b64 exec, 0")
    a.label("L_s_tail")
    a(f"s_cmp_ge_u32 {sRI}, 40"); a(f"s_cselect_b32 {sT1}, {64-TRF}, {64-TRR}")
    a(f"s_mov_b32 {sT0}, {OFF_ST}")
    def tr_b():
        a("s_waitcnt vmcnt(0)"); a(f"v_cmp_ne_u32 vcc, {sTAG}, v{tM}")
        a(f"s_bcnt1_i32_b64 {sT2}, vcc"); a(f"s_cmp_gt_u32 {sT2}, {sT1}"); a("s_cselect_b64 vcc, -1, 0")
    a(f"s_cmp_lg_u32 {sWAVE}, 0"); a("s_cbranch_scc1 L_s_trigx")
    poll("L_s_trig", [f"buffer_load_dword v{tM}, v{tA+5}, {S(rWS)}, {sT0} offen offset:4 sc1"], tr_b, sleep=tsleep)
    a.label("L_s_trigx")
    dbar()
    stamp(3)
    a(f"s_cmp_lt_u32 {sRI}, 40"); a("s_cbranch_scc1 L_R")
    a("s_cbranch_execz L_F")
    stage_ffn("d", 31)
    stamp(8)
    a("s_branch L_F")
    a.label("L_R")
    a("s_cbranch_execz L_R_nodma")
    wo_issue(0)
    a.label("L_R_nodma")
    a(f"s_mov_b32 {sT3}, {f32(LOG2E)}")
    a(f"v_cmp_gt_u32 {sM1}, 2, v{vC}")
    tQ = 156
    stl = [f"buffer_load_dwordx4 {V(tQ+4*i,4)}, v{rST}, {S(rWS)}, {sSTO} offen offset:{16*i} sc1" for i in range(3)]
    for l in stl: a(l)
    a("s_waitcnt vmcnt(0)")
    dbar()
    wo_frags(tF)
    def st_chk():
        for i in range(3): a(f"v_bitop3_b32 v{tM+i}, v{tQ+4*i+1}, v{tQ+4*i+3}, {sTAG} bitop3:0x7e")
        a(f"v_or3_b32 v{tM}, v{tM}, v{tM+1}, v{tM+2}")
        a(f"v_cmp_ne_u32 vcc, 0, v{tM}")
    st_chk()
    a("s_cbranch_vccz L_R_stok")
    def st_body():
        a("s_waitcnt vmcnt(0)"); st_chk()
    poll("L_R_pst", stl, st_body, sleep=2)
    a.label("L_R_stok")
    a(f"v_max3_f32 v{tM}, v{tQ}, v{tQ+4}, v{tQ+8}")
    for s_ in range(3): a(f"v_sub_f32 v{tS+2*s_}, v{tQ+4*s_}, v{tM}")
    for s_ in range(3): a(f"v_mul_f32 v{tS+2*s_}, {sT3}, v{tS+2*s_}")
    for s_ in range(3): a(f"v_exp_f32 v{tS+2*s_}, v{tS+2*s_}")
    a(f"v_mul_f32 v{tM}, v{tS}, v{tQ+2}")
    for s_ in range(1, 3): a(f"v_fmac_f32 v{tM}, v{tS+2*s_}, v{tQ+4*s_+2}")
    a(f"v_rcp_f32 v{tM}, v{tM}")
    for s_ in range(3): a(f"v_mul_f32 v{tS+2*s_}, v{tS+2*s_}, v{tM}")
    tAC = 168; tAC2 = 176
    for r in range(16): a(f"v_mov_b32 v{tAC+r}, 0")
    stamp(5)
    sMINE, sDONE = sT1, sT2
    a(f"s_mov_b32 {sMINE}, 0"); a(f"s_mov_b32 {sDONE}, -16"); a(f"s_mov_b32 {sSP}, {4*SPIN}")
    a(f"s_cmp_lg_u32 {sDRY}, 0"); a(f"s_cselect_b32 {sSP}, 2, {sSP}")
    a.label("L_R_loop")
    a(f"s_cmp_lg_u32 {sMINE}, 0"); a("s_cbranch_scc1 L_R_chk")
    if rsleep: a(f"s_sleep {rsleep}")
    for s_ in range(3): a(f"buffer_load_dwordx4 {V(tR[s_],4)}, v{rOP}, {S(rWS)}, {sOPO} offen offset:{512*s_} sc1")
    a.label("L_R_chk")
    a(f"ds_read_b32 v{tS+1}, v{tA+1} offset:{L_RM}")
    if rspec:
        a(f"s_ff0_i32_b32 {sCNT}, {sDONE}"); a(f"s_lshl_b32 {sT0}, {sCNT}, 8"); a(f"v_add_u32 v{tS+3}, {sT0}, v{rOR}")
        a(f"ds_read_b128 {V(tO[0],4)}, v{tS+3} offset:{L_OB}")
    a(f"s_sub_u32 {sSP}, {sSP}, 1")
    a(f"s_waitcnt lgkmcnt({1 if rspec else 0})")
    a(f"v_readfirstlane_b32 {sT3}, v{tS+1}")
    a(f"s_lshr_b32 {sT3}, {sT3}, {sSH}")
    a(f"s_cmp_eq_u32 {sSP}, 0"); a(f"s_cselect_b32 {sT3}, 15, {sT3}")
    a(f"s_andn2_b32 {sT3}, {sT3}, {sDONE}")
    a("s_cbranch_scc0 L_R_own")
    a(f"s_or_b32 {sDONE}, {sDONE}, {sT3}")
    for hh in range(4):
        a(f"s_bitcmp1_b32 {sT3}, {hh}"); a(f"s_cbranch_scc0 L_R_h{hh}")
        to_ = tO[0] if rspec else tO[hh]
        if rspec and hh: a(f"s_cmp_eq_u32 {sCNT}, {hh}"); a(f"s_cbranch_scc1 L_R_s{hh}")
        if not (rspec and hh == 0): a(f"ds_read_b128 {V(to_,4)}, v{rOR} offset:{L_OB+256*hh}")
        if rspec and hh: a.label(f"L_R_s{hh}")
        a("s_waitcnt lgkmcnt(0)")
        for k in range(2): a(f"v_smfmac_f32_16x16x64_bf16 {V(tAC+4*k,4)}, {V(to_,4)}, {V(tF+16*hh+8*k,8)}, v15")
        a(f"s_cmp_eq_u32 {sDBL}, 0"); a(f"s_cbranch_scc1 L_R_h{hh}")
        for k in range(2): a(f"v_smfmac_f32_16x16x64_bf16 {V(tAC2+4*k,4)}, {V(to_,4)}, {V(tF2+16*hh+8*k,8)}, v15")
        a.label(f"L_R_h{hh}")
    a(f"s_cmp_eq_u32 {sDONE}, -1"); a("s_cbranch_scc1 L_R_fin")
    a.label("L_R_own")
    a(f"s_cmp_lg_u32 {sMINE}, 0"); a("s_cbranch_scc1 L_R_chk")
    for s_ in range(3):
        r_ = tR[s_]
        a(f"s_waitcnt vmcnt({2-s_})")
        for e in range(4): a(f"v_xor_b32 v{r_+e}, {sTB}, v{r_+e}")
        for e in (0, 2):
            if s_ == 0: a(f"v_pk_mul_f32 {V(tM+e,2)}, {V(r_+e,2)}, {V(tS,2)} op_sel_hi:[1,0]")
            else: a(f"v_pk_fma_f32 {V(tM+e,2)}, {V(r_+e,2)}, {V(tS+2*s_,2)}, {V(tM+e,2)} op_sel_hi:[1,0,1]")
        if s_ == 0: a(f"v_or_b32 v{tQ}, v{r_}, v{r_+1}")
        else: a(f"v_or3_b32 v{tQ}, v{tQ}, v{r_}, v{r_+1}")
        a(f"v_or3_b32 v{tQ}, v{tQ}, v{r_+2}, v{r_+3}")
    a(f"v_cmp_ne_u32_sdwa vcc, v{tQ}, 0 src0_sel:BYTE_0 src1_sel:DWORD")
    a(f"v_cvt_pk_bf16_f32 v{tM}, v{tM}, v{tM+1}"); a(f"v_cvt_pk_bf16_f32 v{tM+2}, v{tM+2}, v{tM+3}")
    a(f"s_cmp_lt_u32 {sSP}, 64"); a(f"s_cselect_b64 {sM2}, 0, -1"); a(f"s_and_b64 vcc, vcc, {sM2}")
    a("s_cbranch_vccnz L_R_loop")
    a(f"ds_write2_b32 v{rOW}, v{tM}, v{tM+2} offset0:0 offset1:32")
    exset(1)
    a(f"ds_or_b32 v{tA+1}, v52 offset:{L_RM}")
    exfull()
    a(f"s_mov_b32 {sMINE}, 1")
    stamp(6)
    a("s_branch L_R_chk")
    a.label("L_R_fin")
    def rfin(ac, off):
        a(f"v_add_f32 v{ac}, v{ac}, v{ac+1}"); a(f"v_add_f32 v{ac+4}, v{ac+4}, v{ac+5}")
        a(f"v_permlane32_swap_b32 v{ac+4}, v{ac+2}")
        a(f"v_add_f32 v{ac}, v{ac}, v{ac+2}")
        exset("0xffffffff")
        a(f"ds_wrxchg_rtn_b32 v{ac+1}, v{rXS}, v{ac} offset:{L_XS+off}")
        a("s_waitcnt lgkmcnt(0)")
        a(f"v_cmp_ne_u32 vcc, -1, v{ac+1}")
        a(f"v_add_f32 v{ac}, v{ac}, v{ac+1}")
        settag(ac, ac)
        a("s_and_b64 exec, exec, vcc")
        a(f"buffer_store_dword v{ac}, v{tA+4}, {S(rWS)}, {sYP} offen offset:{off} sc1")
        exfull()
    a("s_nop 3")
    rfin(tAC, 0)
    a(f"s_cmp_eq_u32 {sDBL}, 0"); a("s_cbranch_scc1 L_R_x")
    rfin(tAC2, 512)
    a.label("L_R_x")
    exfull()
    stamp(7)
    a("s_branch L_end")
    a.label("L_F")
    a(f"s_mov_b32 {sT3}, 0x3f803f80")
    a(f"v_cmp_gt_u32 {sM0}, 40, v{vLANE}")
    fZD = 232
    for r in range(8): a(f"v_mov_b32 v{fZ+r}, 0")
    for r in range(20): a(f"v_mov_b32 v{fZD+r}, 0")
    exset(sM0)
    if stamps: a("s_waitcnt vmcnt(0)")
    if True:
        fAc = fY + 32; sV = sT1
        for r in range(4): a(f"v_mov_b32 v{fAc+r}, 0")
        a(f"s_mov_b32 {sV}, 0"); a(f"s_mov_b32 {sSP}, {SPIN}")
        if early: a("s_cbranch_execnz L_F_i3")
        a.label("L_F_poll")
        if psleep: a(f"s_sleep {psleep}")
        for kb in range(4):
            a(f"s_bitcmp1_b32 {sV}, {kb}"); a(f"s_cbranch_scc1 L_F_i{kb}")
            a(f"buffer_load_dwordx4 {V(fY+4*kb,4)}, v{fA+2}, {S(rWS)}, s{90+kb} offen sc1")
            a.label(f"L_F_i{kb}")
        a(f"s_sub_u32 {sSP}, {sSP}, 1"); a(f"s_cmp_eq_u32 {sSP}, 0"); a(f"s_cselect_b64 {sM2}, 0, -1")
        a("s_waitcnt vmcnt(0)")
        for kb in range(4):
            b_ = fY + 4 * kb
            a.label(f"L_F_c{kb}")
            a(f"s_bitcmp1_b32 {sV}, {kb}"); a(f"s_cbranch_scc1 L_F_c{kb+1}")
            chktag(range(b_, b_ + 4), fAc + 4, fAc + 5)
            a(f"s_and_b64 vcc, vcc, {sM2}")
            a(f"s_cbranch_vccnz L_F_c{kb+1}")
            a(f"v_pk_add_f32 {V(fAc,2)}, {V(fAc,2)}, {V(b_,2)}"); a(f"v_pk_add_f32 {V(fAc+2,2)}, {V(fAc+2,2)}, {V(b_+2,2)}")
            a(f"s_bitset1_b32 {sV}, {kb}")
            a(f"s_cmp_eq_u32 {sV}, 15"); a("s_cbranch_scc1 L_F_got")
        a.label("L_F_c4")
        a("s_branch L_F_poll")
        a.label("L_F_got")
        a(f"v_cvt_pk_bf16_f32 v{fAc+10}, v{fAc}, v{fAc+1}"); a(f"v_cvt_pk_bf16_f32 v{fAc+11}, v{fAc+2}, v{fAc+3}")
        a.label("L_F_got2")
        a(f"v_and_b32 v{fY+1}, 0xffff0000, v{fAc+10}"); a(f"v_lshlrev_b32 v{fY}, 16, v{fAc+10}")
        a(f"v_and_b32 v{fY+3}, 0xffff0000, v{fAc+11}"); a(f"v_lshlrev_b32 v{fY+2}, 16, v{fAc+11}")
    a(f"v_pk_add_f32 {V(fY,2)}, {V(fY,2)}, {V(fX,2)}"); a(f"v_pk_add_f32 {V(fY+2,2)}, {V(fY+2,2)}, {V(fX+2,2)}")
    a(f"v_cvt_pk_bf16_f32 v{fY}, v{fY}, v{fY+1}"); a(f"v_cvt_pk_bf16_f32 v{fY+1}, v{fY+2}, v{fY+3}")
    a(f"ds_write2_b32 v{fA+1}, v{fY}, v{fY+1} offset0:0 offset1:160")
    a(f"v_dot2_f32_bf16 v{fY+2}, v{fY}, {sT3}, 0"); a(f"v_dot2_f32_bf16 v{fY+3}, v{fY}, v{fY}, 0")
    a(f"v_dot2_f32_bf16 v{fY+2}, v{fY+1}, {sT3}, v{fY+2}"); a(f"v_dot2_f32_bf16 v{fY+3}, v{fY+1}, v{fY+1}, v{fY+3}")
    for mod in ROWRED[:2]:
        for r in (2, 3): a(f"v_add_f32_dpp v{fY+r}, v{fY+r}, v{fY+r} {mod} {DPPF}")
    a(f"ds_write_b64 v{fA}, {V(fY+2,2)} offset:{L_SP}")
    exfull()
    if not fst: stamp(9)
    cyc(0)
    a("s_waitcnt lgkmcnt(0)")
    dbar()
    cyc(1)
    if fst: a("s_waitcnt lgkmcnt(0)")
    s1, s2, sr = fT, fT + 1, fT + 2
    fS = 204
    a(f"ds_read2_b64 {V(fS,4)}, v{fA+4} offset0:0 offset1:32")
    for ks in range(5): a(f"ds_read_b128 {V(fB+4*ks,4)}, v{fA+3} offset:{L_HN+64*ks}")
    VL = []
    VL.append(f"v_pk_add_f32 {V(s1,2)}, {V(fS,2)}, {V(fS+2,2)}")
    VL.append(None)
    VL.append(f"v_permlane32_swap_b32 v{s1}, v{s2}")
    VL.append(f"v_add_f32 v{s1}, v{s1}, v{s2}")
    for mod in ROWRED: VL.append(None); VL.append(f"v_add_f32_dpp v{s1}, v{s1}, v{s1} {mod} {DPPF}")
    VL.append(f"v_mul_f32 v{s1}, {f32(1/640)}, v{s1}")
    VL.append(f"v_mov_b32 v{s2}, v{s1}")
    VL.append(None)
    VL.append(f"v_permlane32_swap_b32 v{s1}, v{s2}")
    VL.append(f"v_fma_f32 v{s2}, -v{s1}, v{s1}, v{s2}")
    VL.append(f"v_max_f32 v{s2}, 0, v{s2}")
    VL += ln_finish_l(s1, s2, sr)
    VL.append(f"v_mul_f32 v{s1}, v{s1}, v47")
    vi = 0
    for m in range(10):
        ks = m >> 1; cl = m & 1
        if m == 0:
            a("s_waitcnt lgkmcnt(5)")
            a(VL[vi]); vi += 1
        if cl == 0: a(f"s_waitcnt lgkmcnt({4-ks})")
        a(f"v_smfmac_f32_16x16x64_bf16 {V(fZ+4*cl,4)}, {V(fB+4*ks,4)}, {V(fGU+8*(ks+5*cl),8)}, v15")
        if True:
            cnt = 0
            while vi < len(VL) and cnt < 4:
                if VL[vi] is None:
                    vi += 1
                    if cnt: break
                    continue
                a(VL[vi]); vi += 1; cnt += 1
    while vi < len(VL):
        if VL[vi]: a(VL[vi])
        vi += 1
    cyc(2)
    g_, t_ = fZ + 12, fZ + 14
    a(f"v_add_f32 v{fZ+4}, v{fZ+4}, v{fZ+5}")
    a(f"v_sub_f32 v{g_}, v{fZ}, v{s1}")
    a(f"v_add_f32 v{g_}, v{g_}, v{fZ+1}")
    a(f"v_permlane32_swap_b32 v{fZ+4}, v{fZ+2}")
    a(f"v_add_f32 v{g_}, v{g_}, v{fZ+2}")
    a(f"v_mul_f32 v{g_}, v{g_}, v{sr}")
    bf16r(f"v{g_}", f"v{g_}")
    a(f"v_mul_f32 v{t_}, v{g_}, v{g_}")
    c1 = -2.0 * 0.7978845608028654 * LOG2E
    a(f"v_mov_b32 v{t_+1}, {f32(c1)}")
    a(f"v_fmac_f32 v{t_+1}, {f32(c1 * 0.044715)}, v{t_}")
    a(f"v_mul_f32 v{t_}, v{t_+1}, v{g_}")
    a(f"v_exp_f32 v{t_}, v{t_}")
    a(f"v_add_f32 v{t_}, 1.0, v{t_}")
    a(f"v_rcp_f32 v{t_}, v{t_}")
    a(f"v_mul_f32 v{t_}, v{g_}, v{t_}")
    bf16r(f"v{t_}", f"v{t_}")
    a(f"v_mul_f32_dpp v{t_}, v{g_}, v{t_} row_ror:8 {DPPF}")
    a(f"v_cvt_pk_bf16_f32 v{t_}, v{t_}, v{t_}")
    exset("0x00ff00ff")
    a(f"ds_write_b16 v{fA+5}, v{t_} offset:{L_AC}")
    exfull()
    cyc(3)
    a("s_waitcnt lgkmcnt(0)")
    a.label("L_F_b2")
    dbar()
    cyc(4)
    if fst: a("s_waitcnt lgkmcnt(0)")
    a(f"ds_read_b128 {V(fB,4)}, v{fAD} offset:{L_AC}")
    a("s_waitcnt lgkmcnt(0)")
    for i in (4, 0, 1, 2, 3):
        a(f"v_smfmac_f32_16x16x64_bf16 {V(fZD+4*i,4)}, {V(fB,4)}, {V(fD+8*i,8)}, v{fAD+4}")
    a(f"v_pk_add_f32 {V(fZD+16,2)}, {V(fZD+16,2)}, {V(fZD+18,2)}")
    a(f"v_pk_add_f32 {V(fZ,2)}, {V(fZD,2)}, {V(fZD+2,2)}")
    settag(fZD + 16, fZD + 16); settag(fZD + 17, fZD + 17)
    for i in (1, 2, 3):
        if i == 3:
            exset("0xffff")
            a(f"buffer_store_dwordx2 {V(fZD+16,2)}, v{tA}, {S(rWS)}, s98 offen offset:512 sc1")
            exfull()
        for r in range(2): a(f"v_add_f32_dpp v{fZ+r}, v{fZD+4*i+r}, v{fZD+4*i+2+r} quad_perm:[0,1,2,3] row_mask:{hex(1<<i)} bank_mask:0xf")
    settag(fZ, fZ); settag(fZ + 1, fZ + 1)
    a(f"buffer_store_dwordx2 {V(fZ,2)}, v{tA}, {S(rWS)}, s98 offen sc1")
    cyc(5); cyc(6)
    a(f"s_cmp_lg_u32 {sFI}, 0"); a("s_cbranch_scc1 L_F_x")
    a(f"s_cmp_lg_u32 {sWAVE}, 4"); a("s_cbranch_scc1 L_F_x")
    exset(1)
    a(f"v_mov_b32 v{fB}, {sTAG}"); a(f"s_mov_b32 {sT0}, {OFF_EP}")
    a(f"buffer_store_dword v{fB}, v{tA+1}, {S(rWS)}, {sT0} offen sc1")
    a.label("L_F_x")
    exfull()
    if fst:
        cyc(7)
        a("s_memrealtime s[32:33]")
        a("s_waitcnt lgkmcnt(0)")
        a("s_lshl_b32 s86, s2, 3"); a(f"s_add_u32 s86, s86, {sWAVE}"); a("s_lshl_b32 s86, s86, 7"); a(f"s_add_u32 s86, s86, {OFF_TS + 0x40000}")
        exset(1)
        for i in range(9):
            a(f"v_mov_b32 v60, s{16+2*i}"); a(f"v_mov_b32 v61, s{17+2*i}"); a("v_mov_b32 v62, 0")
            a(f"buffer_store_dwordx2 v[60:61], v62, {S(rWS)}, s86 offen offset:{8*i}")
        a("v_mov_b32 v60, s100"); a("v_mov_b32 v61, s101")
        a(f"buffer_store_dwordx2 v[60:61], v62, {S(rWS)}, s86 offen offset:72")
        a("v_mov_b32 v60, s70"); a("v_mov_b32 v61, s71")
        a(f"buffer_store_dwordx2 v[60:61], v62, {S(rWS)}, s86 offen offset:80")
        exfull()
        a.label("L_F_y")
    stamp(10)
    a.label("L_end")
    if dry:
        a(f"s_cmp_eq_u32 {sDRY}, 0"); a("s_cbranch_scc1 L_exit")
        a(f"s_mov_b32 {sDRY}, 0"); a(f"s_mov_b64 {sFULL}, -1"); a("s_mov_b64 exec, -1")
        a("s_waitcnt vmcnt(0) lgkmcnt(0)")
        a("s_branch L_s_tail")
    a.label("L_exit")
    a("s_endpgm")

    i0 = a.lines.index("L_s_tail:"); i1 = a.lines.index("L_end:")
    out = []; run = False
    for i, l in enumerate(a.lines):
        vm = i0 < i < i1 and l.startswith("buffer_") and not l.endswith(" lds")
        if vm and not run: n_ = uid(); out.append(f"s_cbranch_execz L_vm{n_}")
        if run and not vm: out.append(f"L_vm{n_}:")
        run = vm
        out.append(l)
    a.lines = out
    hdr = open("sequential_preLN__gqa_block_cached__geglu_ffn__decode.s.ref").read().split("; Override launch")[0]
    return hdr + f"""; @launch grid=(256,1,1) block=(512,1,1) lds={LDS_BYTES}
.amdgcn_target "amdgcn-amd-amdhsa--gfx950"
; ---------------------------------------------------------------------------------------------
; One launch, 256 co-resident workgroups (one per CU), generated by a script of my own.
;   wg 64..255 ("S", 3 per (batch, head) row): stream K then V once (nt loads, bounded in-flight depth),
;       scores = bf16(bf16(q.k) * Dh^-0.5), true max per wave / workgroup / row, P.V on the matrix cores,
;       publish unnormalised partial o and (max, sum).  wg 64..103 finally reduce the FFN partials -> d_out.
;   wg 0..63 (service): LayerNorm(x) and q projection first; near the end of the streaming they stage
;       wo (wg 27..63, "R": combine splits, o @ wo) or gate/up/down (wg 0..26, "F": h, LayerNorm, GeGLU, down).
; Hand-offs go through d_ws with write-through stores / L1-bypassing loads; every word carries this launch's
; tag (derived from an epoch word the previous launch left, used only to tell fresh words from stale ones),
; and the tag bits are stripped before use, so results do not depend on the contents of d_ws.
; ---------------------------------------------------------------------------------------------
.text
.globl {NAME}
.p2align 8
.type {NAME},@function
{NAME}:
""" + a.finalize() + f""".section .rodata,"a"
.p2align 6
.amdhsa_kernel {NAME}
  .amdhsa_next_free_vgpr 256
  .amdhsa_next_free_sgpr 102
  .amdhsa_accum_offset 256
  .amdhsa_group_segment_fixed_size 0
  .amdhsa_kernarg_size 96
  .amdhsa_user_sgpr_count 2
  .amdhsa_user_sgpr_kernarg_segment_ptr 1
  .amdhsa_system_sgpr_workgroup_id_x 1
  .amdhsa_float_denorm_mode_32 3
.end_amdhsa_kernel
"""

if __name__ == "__main__":
    kw = eval("dict(%s)" % (sys.argv[2] if len(sys.argv) > 2 else ""))
    open(sys.argv[1], "w").write(gen(**kw))
```
